```python
import torch

def _softmax(x, axis=-1):
    return torch.softmax(x, dim=axis)
def _gelu(x):
    return torch.nn.functional.gelu(x, approximate="tanh")
def _silu(x):
    return torch.nn.functional.silu(x)
def _sigmoid(x):
    return torch.sigmoid(x)
def _layernorm(x, axis=-1, eps=1e-5):
    m = x.mean(dim=axis, keepdim=True)
    v = x.var(dim=axis, keepdim=True, unbiased=False)
    return (x - m) / torch.sqrt(v + eps)
def _scatter_add(tgt, idx, src, axis=0):
    return tgt.clone().index_add_(axis, idx, src)
def _segment_sum(src, seg, n):
    out = torch.zeros((n,) + src.shape[1:], dtype=src.dtype)
    return out.index_add_(0, seg, src)
def _pad(x, pw):
    flat = tuple(v for pair in reversed(pw) for v in pair)
    return torch.nn.functional.pad(x, flat)

kernel_name = 'gated_mix__ssm_conv_s4d__mixer_token_mlp__prompt'

def setup_inputs():

    _w = (lambda a: (lambda t: t.to(torch.bfloat16) if t.is_floating_point() else t)(torch.as_tensor(a)))
    def _A_setup():
        Bsz, L, D, N = 1, 2048, 640, 128
        return {
            "u": _w((lambda *s: torch.randn(*s, dtype=torch.bfloat16) * 0.05)(Bsz, L, D)),
            "log_A_real": _w((lambda *s: torch.randn(*s, dtype=torch.bfloat16) * 3.2)(D, N) * 0.5),
            "A_imag": _w((lambda *s: torch.randn(*s, dtype=torch.bfloat16) * 0.05)(D, N) * 3.14),
            "C_real": _w((lambda *s: torch.randn(*s, dtype=torch.bfloat16) * 0.1)(D, N) / N ** 0.5),
            "C_imag": _w((lambda *s: torch.randn(*s, dtype=torch.bfloat16) * 0.1)(D, N) / N ** 0.5),
            "log_dt": _w((lambda *s: torch.randn(*s, dtype=torch.bfloat16) * 0.05)(D) * 0.5 - 4.0),
            "D_skip": _w((lambda *s: torch.randn(*s, dtype=torch.bfloat16) * 0.05)(D)),
        }
    _A_in = _A_setup()

    def _B_setup():
        B, S, D, F = 1, 2048, 640, 1728
        return {
            "x": _w((lambda *s: torch.randn(*s, dtype=torch.bfloat16) * 0.05)(B, S, D)),
            "w1": _w((lambda *s: torch.randn(*s, dtype=torch.bfloat16) * 0.2)(S, F) * (S ** -0.5)),
            "b1": _w((lambda *s: torch.randn(*s, dtype=torch.bfloat16) * 3.2)(F) * 0.02),
            "w2": _w((lambda *s: torch.randn(*s, dtype=torch.bfloat16) * 0.05)(F, S) * (F ** -0.5)),
            "b2": _w((lambda *s: torch.randn(*s, dtype=torch.bfloat16) * 0.1)(S) * 0.02),
        }
    _B_in = _B_setup()

    return {
        "A_u": _A_in["u"],
        "A_log_A_real": _A_in["log_A_real"],
        "A_A_imag": _A_in["A_imag"],
        "A_C_real": _A_in["C_real"],
        "A_C_imag": _A_in["C_imag"],
        "A_log_dt": _A_in["log_dt"],
        "A_D_skip": _A_in["D_skip"],
        "B_x": _B_in["x"],
        "B_w1": _B_in["w1"],
        "B_b1": _B_in["b1"],
        "B_w2": _B_in["w2"],
        "B_b2": _B_in["b2"],
        "gate_w": _w((lambda *s: torch.randn(*s, dtype=torch.bfloat16) * 0.05)(640) * 16.0),
    }

def reference(A_u, A_log_A_real, A_A_imag, A_C_real, A_C_imag, A_log_dt, A_D_skip, B_x, B_w1, B_b1, B_w2, B_b2, gate_w):
    def _A_ref(u, log_A_real, A_imag, C_real, C_imag, log_dt, D_skip):
        L = u.shape[1]
        dt = torch.exp(log_dt)
        A = -torch.exp(log_A_real) + 1j * A_imag
        C = (C_real + 1j * C_imag) * dt[:, None]
        pos = (lambda x, dt: x.to(dt))(torch.arange(L), log_dt.dtype)
        P = torch.exp((A * dt[:, None])[:, :, None] * pos[None, None, :])
        K = 2.0 * torch.einsum("dn,dnl->dl", C, P).real
        L2 = 2 * L
        u_t = (lambda x, *d: x.permute(*d))(u, 0, 2, 1)
        Kf = (lambda x, *a, **k: torch.fft.rfft(x.float(), *a, **k))(K, L2)
        Uf = (lambda x, *a, **k: torch.fft.rfft(x.float(), *a, **k))(u_t, L2)
        y = (lambda x, *a, **k: torch.fft.irfft(x, *a, **k).to(torch.bfloat16))(Uf * Kf[None, :, :], L2)[:, :, :L]
        y = (lambda x, *d: x.permute(*d))(y, 0, 2, 1)
        return y + u * D_skip[None, None, :]

    def _B_ref(x, w1, b1, w2, b2):
        B, S, D = x.shape
        h = _layernorm(x, axis=-1)
        u = torch.einsum("bsd,sf->bdf", h, w1) + b1
        u = _gelu(u)
        y = torch.einsum("bdf,fs->bds", u, w2) + b2
        return (lambda x, *d: x.permute(*d))(y, 0, 2, 1)

    x = A_u
    g = _sigmoid((x * gate_w).sum(-1, keepdims=True))
    a = _A_ref(x, A_log_A_real, A_A_imag, A_C_real, A_C_imag, A_log_dt, A_D_skip)
    b = _B_ref(x, B_w1, B_b1, B_w2, B_b2)
    return g * a + (1 - g) * b
```

```python
import re
TRANS = ("v_exp_f32","v_log_f32","v_rcp_f32","v_rsq_f32","v_sqrt_f32","v_sin_f32","v_cos_f32","v_rcp_iflag_f32")
REG = re.compile(r'^(-|\|)?(abs\()?([vsa])(\d+)\)?\|?$')
RNG = re.compile(r'^(-)?([vsa])\[(\d+):(\d+)\]$')
def regs(op):
    op = op.strip()
    m = RNG.match(op)
    if m: return {(m.group(2), i) for i in range(int(m.group(3)), int(m.group(4))+1)}
    m = REG.match(op)
    if m: return {(m.group(3), int(m.group(4)))}
    if op in ("vcc",): return {("s","vcc")}
    if op in ("exec",): return {("s","exec")}
    if op == "m0": return {("s","m0")}
    return set()
class Ins:
    def __init__(self, text):
        self.text = text
        t = text.split(";")[0].strip()
        self.label = t.endswith(":")
        self.empty = (t == "" or t.startswith("."))
        parts = t.split(None, 1)
        self.op = parts[0] if parts else ""
        rest = parts[1] if len(parts) > 1 else ""
        ops = []; cur = ""; depth = 0
        for ch in rest:
            if ch in "[(": depth += 1
            if ch in "])": depth -= 1
            if ch == "," and depth == 0: ops.append(cur.strip()); cur = ""
            else: cur += ch
        if cur.strip(): ops.append(cur.strip())
        self.mods = ""
        if ops:
            last = ops[-1].split(None, 1)
            ops[-1] = last[0]; self.mods = last[1] if len(last) > 1 else ""
        self.ops = ops
        op = self.op
        self.W = set(); self.R = set()
        self.valu = op.startswith("v_") and not op.startswith("v_mfma")
        self.mfma = op.startswith("v_mfma")
        self.trans = op.replace("_e32","").replace("_e64","") in TRANS
        self.dpp = "_dpp" in op or "quad_perm" in self.mods or "row_" in self.mods or "wave_sh" in self.mods
        self.perm = op.startswith("v_permlane")
        self.rdlane = op.startswith("v_readlane") or op.startswith("v_readfirstlane")
        self.vmem = op.startswith("buffer_") or op.startswith("global_")
        self.ds = op.startswith("ds_")
        self.salu = op.startswith("s_")
        self.ldsdma = self.vmem and re.search(r'\blds\b', self.mods) is not None
        self.widestore = self.vmem and ("store_dwordx4" in op or "store_dwordx3" in op)
        R = lambda i: regs(ops[i]) if i < len(ops) else set()
        if self.label or self.empty: return
        if self.mfma:
            self.W = R(0); self.A = R(1) | R(2); self.C = R(3); self.R = self.A | self.C
            self.passes = 4 if "16x16x32" in op else 8
        elif self.valu:
            if self.perm:
                self.W = R(0) | R(1); self.R = R(0) | R(1)
            elif op.startswith("v_cmp"):
                self.W = R(0); self.R = set().union(*[R(i) for i in range(1, len(ops))])
            elif "_co_" in op:
                self.W = R(0) | R(1); self.R = set().union(*[R(i) for i in range(2, len(ops))])
            else:
                self.W = R(0); self.R = set().union(*[R(i) for i in range(1, len(ops))]) if len(ops) > 1 else set()
                if op.startswith("v_fmac") or op.startswith("v_writelane") or self.dpp: self.R |= R(0)
                if op.startswith("v_cndmask") and len(ops) == 3: self.R |= {("s","vcc")}
        elif self.ds:
            if op.startswith("ds_read") or op.startswith("ds_bperm") or op.startswith("ds_swizzle"):
                self.W = R(0); self.R = set().union(*[R(i) for i in range(1, len(ops))])
            else:
                self.R = set().union(*[R(i) for i in range(len(ops))])
        elif self.vmem:
            if "load" in op and not self.ldsdma and not op.startswith("global_load_lds"):
                self.W = R(0); self.R = set().union(*[R(i) for i in range(1, len(ops))])
            else:
                self.R = set().union(*[R(i) for i in range(len(ops))]) if ops else set()
                if "atomic" in op and "sc0" in self.mods: self.W = R(0)
            if self.ldsdma: self.R |= {("s","m0")}
        elif self.salu:
            if op.startswith(("s_cmp","s_waitcnt","s_barrier","s_cbranch","s_branch","s_nop","s_endpgm","s_setprio","s_sleep")):
                self.R = set().union(*[R(i) for i in range(len(ops))]) if ops else set()
            else:
                self.W = R(0); self.R = set().union(*[R(i) for i in range(1, len(ops))]) if len(ops) > 1 else set()
                if "saveexec" in op: self.W |= {("s","exec")}
    def states(self):
        if self.label or self.empty: return 0
        if self.op == "s_nop": return int(self.ops[0]) + 1
        return 1
def need(p, c):
    n = 0
    vW = {r for r in p.W if r[0] in "va"}
    sW = {r for r in p.W if r[0] == "s"}
    if p.valu:
        if vW & c.R:
            if p.trans and c.valu and not c.trans: n = max(n, 1)
            if p.trans and (c.mfma): n = max(n, 2)
            if c.dpp: n = max(n, 2)
            if c.perm: n = max(n, 2)
            if c.rdlane: n = max(n, 1)
            if c.mfma: n = max(n, 2)
        if sW & c.R:
            if c.valu or c.mfma: n = max(n, 4 if (c.rdlane or c.op.startswith("v_writelane")) else 2)
            if c.vmem: n = max(n, 5)
        if ("s","exec") in sW and (c.valu or c.mfma): n = max(n, 5)
    if p.mfma:
        big = {4: 8, 8: 12}[p.passes]; ovl = {4: 6, 8: 10}[p.passes]; war = {4: 3, 8: 7}[p.passes]
        if c.mfma:
            if p.W & c.A: n = max(n, big)
            if p.W & c.C and not (p.W == c.C and p.passes == c.passes): n = max(n, ovl)
            if p.W & c.W and not (p.W == c.C): n = max(n, ovl)
        else:
            if (p.W & c.R) or (p.W & c.W): n = max(n, big)
            if c.valu and (p.C & c.W): n = max(n, war)
    if p.salu and ("s","m0") in p.W and c.ldsdma: n = max(n, 1)
    if p.widestore:
        data = regs(p.ops[0]) if p.op.startswith("buffer") else regs(p.ops[1])
        if data & c.W: n = max(n, 2)
    return n
def fix_hazards(lines, window=24):
    out = []
    for l in lines:
        for t in l.split("\n"):
            c = Ins(t)
            if not (c.label or c.empty):
                dist = 0; req = 0
                for p in reversed(out[-window:]):
                    if not (p.label or p.empty):
                        k = need(p, c)
                        if k - dist > req: req = k - dist
                    dist += p.states()
                while req > 0:
                    k = min(req, 16)
                    out.append(Ins(f"s_nop {k-1}")); req -= k
            out.append(c)
    return [i.text for i in out]
def f32bits(x):
    import struct
    return "0x%08x" % struct.unpack("<I", struct.pack("<f", x))[0]
def kdesc(name, vgpr, sgpr=96):
    v = (vgpr + 7)//8*8
    return f""".p2align 6
.amdhsa_kernel {name}
  .amdhsa_next_free_vgpr {v}
  .amdhsa_next_free_sgpr {sgpr}
  .amdhsa_accum_offset {v}
  .amdhsa_group_segment_fixed_size 0
  .amdhsa_kernarg_size 128
  .amdhsa_user_sgpr_count 2
  .amdhsa_user_sgpr_kernarg_segment_ptr 1
  .amdhsa_system_sgpr_workgroup_id_x 1
.end_amdhsa_kernel"""
```

```python
import math, struct, sys
from asmlib import *
import numpy as np

NAME = "gated_mix__ssm_conv_s4d__mixer_token_mlp__prompt"
KA = dict(u=0, logA=8, Aim=16, Cr=24, Ci=32, logdt=40, Dskip=48, Bx=56, w1=64, b1=72, w2=80, b2=88, gw=96, out=104, dbg=112, ws=120)
HT, UT, KR, GO, AT, GATE = 0, 0x280000, 0x500000, 0x780000, 0xA00000, 0xC80000
SZ_X = 2048*640*2
HT_TILE = 64*5120
G_TILE = 54*5120
L2E = 1.4426950408889634
L2E_HI = float(np.float32(L2E)); L2E_LO = L2E - L2E_HI
I2P = 1/(2*math.pi)
I2P_HI = float(np.float32(I2P)); I2P_LO = I2P - I2P_HI

class K:
    def __init__(self): self.L = []
    def __call__(self, s): self.L.append(s)
    def srd(self, d, base, size, off=None):
        if off is None:
            self(f"s_mov_b32 s{d}, s{base}\ns_and_b32 s{d+1}, s{base+1}, 0xffff")
        else:
            self(f"s_add_u32 s{d}, s{base}, {off}\ns_addc_u32 s{d+1}, s{base+1}, 0\ns_and_b32 s{d+1}, s{d+1}, 0xffff")
        self(f"s_mov_b32 s{d+2}, {size}\ns_mov_b32 s{d+3}, 0x20000")
    def bfr(self, dst, src):
        self(f"v_cvt_pk_bf16_f32 v{dst}, v{src}, v{src}\nv_and_b32 v{dst}, 0xffff0000, v{dst}")
    def exp_precise(self, dst, x, t, r, sL, sLlo, sLn2):
        self(f"v_mul_f32 v{t}, s{sL}, v{x}")
        self(f"v_fma_f32 v{r}, v{x}, s{sL}, -v{t}")
        self(f"v_fma_f32 v{r}, v{x}, s{sLlo}, v{r}")
        self(f"v_exp_f32 v{t}, v{t}")
        self(f"v_mul_f32 v{r}, s{sLn2}, v{r}")
        self(f"v_fma_f32 v{dst}, v{t}, v{r}, v{t}")

def header(name):
    return f".globl {name}\n.p2align 8\n.type {name},@function\n{name}:"

KG_WAVE_LDS = 57*272
def gen_ka(prefetch=True):
    k = K(); A = k
    A(header("ka_kernel"))
    A("s_cmp_ge_u32 s2, 384\ns_cbranch_scc1 LA_end")
    A("v_lshrrev_b32 v1, 6, v0\nv_and_b32 v2, 63, v0")
    A("v_readfirstlane_b32 s3, v1")
    A("s_cmp_ge_u32 s2, 256\ns_cbranch_scc1 LA_kgen")
    A(f"s_load_dwordx2 s[4:5], s[0:1], {KA['u']}\ns_load_dwordx2 s[6:7], s[0:1], {KA['gw']}\ns_load_dwordx2 s[8:9], s[0:1], {KA['ws']}\ns_load_dwordx2 s[10:11], s[0:1], {KA['w1']}")
    A("s_and_b32 s64, s2, 7\ns_lshr_b32 s65, s2, 3\ns_lshl_b32 s36, s64, 5\ns_add_u32 s36, s36, s65")
    A("s_mul_i32 s37, s36, 10240")
    A("v_lshlrev_b32 v3, 2, v0")
    A("v_and_b32 v14, 7, v2\nv_mul_u32_u24 v13, 1280, v14")
    A("s_add_u32 s66, s37, 5120")
    A("s_waitcnt lgkmcnt(0)")
    A.srd(12, 4, SZ_X)
    for r in range(8):
        A(f"buffer_load_dword v{4+r}, v3, s[12:15], s{37 if r<4 else 66} offen offset:{(r%4)*1280}")
    A("global_load_dword v12, v3, s[6:7]")
    A("buffer_load_ushort v13, v13, s[12:15], s37 offen")
    A("s_add_u32 s38, s4, s37\ns_addc_u32 s39, s5, 0")
    for r in range(8):
        A(f"s_load_dword s{40+r}, s[38:39], {r*1280}")
    ntouch = 0
    if prefetch:
        A.srd(32, 10, 2048*3456)
        A("v_mul_u32_u24 v15, 3456, v2")
        A("s_lshr_b32 s67, s64, 1\ns_mul_i32 s67, s67, 896\ns_mul_i32 s68, s65, %d\ns_add_u32 s67, s67, s68\ns_lshl_b32 s68, s3, 7\ns_add_u32 s67, s67, s68" % (64*3456))
        A("buffer_load_dword v56, v15, s[32:35], s67 offen")
        A("s_cmp_lt_u32 s3, 2\ns_cselect_b32 s68, 640, 0\ns_add_u32 s67, s67, s68")
        A("buffer_load_dword v57, v15, s[32:35], s67 offen")
        ntouch = 2
    A.srd(20, 8, SZ_X, HT); A.srd(24, 8, SZ_X, UT); A.srd(28, 8, 2048*8, GATE)
    A("v_lshrrev_b32 v58, 3, v0")
    A("v_mul_u32_u24 v59, 205, v58\nv_lshrrev_b32 v59, 10, v59")
    A("v_mul_u32_u24 v60, 5, v59\nv_sub_u32 v60, v58, v60")
    A(f"v_mul_u32_u24 v59, {HT_TILE}, v59\nv_lshl_add_u32 v59, v60, 10, v59")
    A("v_and_b32 v60, 7, v0\nv_lshl_add_u32 v59, v60, 5, v59")
    A("v_lshlrev_b32 v60, 13, v0\nv_add_u32 v61, 4096, v60")
    A("s_lshr_b32 s69, s36, 2\ns_mul_i32 s69, s69, 5120\ns_and_b32 s70, s36, 3\ns_lshl_b32 s70, s70, 8\ns_add_u32 s69, s69, s70")
    A("s_lshl_b32 s70, s36, 4")
    A("s_waitcnt lgkmcnt(0)")
    for r in range(8): A(f"s_lshl_b32 s{40+r}, s{40+r}, 16")
    A(f"s_waitcnt vmcnt({ntouch})")
    A("v_lshlrev_b32 v62, 16, v12\nv_and_b32 v63, 0xffff0000, v12")
    A("v_lshlrev_b32 v13, 16, v13")
    for r in range(8):
        lo, hi = 16+2*r, 17+2*r
        A(f"v_lshlrev_b32 v{lo}, 16, v{4+r}\nv_and_b32 v{hi}, 0xffff0000, v{4+r}")
    A("s_mov_b32 s71, 0x05040100\ns_mov_b32 s72, 0x07060302")
    for i in range(4):
        A(f"v_perm_b32 v{64+i}, v{5+2*i}, v{4+2*i}, s71\nv_perm_b32 v{68+i}, v{5+2*i}, v{4+2*i}, s72")
    A("buffer_store_dwordx4 v[64:67], v60, s[24:27], s70 offen\nbuffer_store_dwordx4 v[68:71], v61, s[24:27], s70 offen")
    for r in range(8):
        lo, hi = 16+2*r, 17+2*r
        A(f"v_subrev_f32 v72, s{40+r}, v{lo}\nv_subrev_f32 v73, s{40+r}, v{hi}")
        A(f"v_mul_f32 v74, v{lo}, v62\nv_mul_f32 v75, v{hi}, v63")
        A(f"v_add_f32 v{32+r}, v72, v73\nv_mul_f32 v{40+r}, v72, v72\nv_cvt_pk_bf16_f32 v74, v74, v75")
        A(f"v_fmac_f32 v{40+r}, v73, v73\nv_lshlrev_b32 v75, 16, v74\nv_and_b32 v74, 0xffff0000, v74")
        A(f"v_add_f32 v{48+r}, v74, v75")
    for i in range(12): A(f"v_permlane32_swap_b32 v{32+2*i}, v{33+2*i}")
    for i in range(12): A(f"v_add_f32 v{32+2*i}, v{32+2*i}, v{33+2*i}")
    for i in range(6): A(f"v_permlane16_swap_b32 v{32+4*i}, v{34+4*i}")
    for i in range(6): A(f"v_add_f32 v{72+i}, v{32+4*i}, v{34+4*i}")
    for ctl in ("quad_perm:[1,0,3,2]", "quad_perm:[2,3,0,1]", "row_half_mirror", "row_mirror"):
        for i in range(6): A(f"v_add_f32_dpp v{72+i}, v{72+i}, v{72+i} {ctl} row_mask:0xf bank_mask:0xf")
    A("v_lshrrev_b32 v32, 4, v2\nv_lshlrev_b32 v32, 5, v32\ns_lshl_b32 s73, s3, 7\nv_add_u32 v32, s73, v32")
    A("v_and_b32 v33, 15, v2\nv_cmp_eq_u32 vcc, 0, v33\ns_and_saveexec_b64 s[74:75], vcc")
    A("ds_write_b128 v32, v[72:75]\nds_write_b64 v32, v[76:77] offset:16")
    A("s_mov_b64 exec, s[74:75]")
    A("v_and_b32 v33, 1, v14\nv_lshlrev_b32 v33, 6, v33\nv_and_b32 v34, 2, v14\nv_lshl_add_u32 v33, v34, 4, v33\nv_and_b32 v34, 4, v14\nv_add_u32 v33, v33, v34")
    A("s_waitcnt lgkmcnt(0)\ns_barrier")
    for w in range(5):
        A(f"ds_read2_b32 v[{36+4*w}:{37+4*w}], v33 offset0:{w*32} offset1:{w*32+2}\nds_read_b32 v{38+4*w}, v33 offset:{w*128+16}")
    A("s_waitcnt lgkmcnt(0)")
    for q in range(3):
        A(f"v_add_f32 v{36+q}, v{36+q}, v{40+q}\nv_add_f32 v{44+q}, v{44+q}, v{48+q}")
    for q in range(3):
        A(f"v_add_f32 v{36+q}, v{36+q}, v{44+q}")
    for q in range(3):
        A(f"v_add_f32 v{36+q}, v{36+q}, v{52+q}")
    inv = f32bits(1/640)
    A(f"v_mul_f32 v36, {inv}, v36\nv_mul_f32 v37, {inv}, v37")
    A("v_fma_f32 v37, -v36, v36, v37\nv_add_f32 v36, v36, v13\nv_max_f32 v37, 0, v37")
    A.bfr(36, 36); A.bfr(37, 37); A.bfr(38, 38)
    A(f"v_add_f32 v37, {f32bits(1e-5)}, v37\nv_mul_f32 v38, {f32bits(-L2E)}, v38")
    A.bfr(37, 37)
    A("v_exp_f32 v38, v38\nv_sqrt_f32 v37, v37")
    A("v_add_f32 v38, 1.0, v38")
    A.bfr(37, 37)
    A("v_rcp_f32 v38, v38\nv_rcp_f32 v37, v37")
    A.bfr(40, 38)
    A("v_sub_f32 v41, 1.0, v40")
    A.bfr(41, 41)
    for r in range(8): A(f"v_readlane_b32 s{48+r}, v36, {r}\nv_readlane_b32 s{56+r}, v37, {r}")
    A("s_cmp_lg_u32 s3, 0\ns_cbranch_scc1 LA_nogate")
    A("v_lshlrev_b32 v42, 3, v2\ns_lshl_b32 s73, s36, 6\ns_mov_b64 exec, 0xff")
    A("buffer_store_dwordx2 v[40:41], v42, s[28:31], s73 offen\ns_mov_b64 exec, -1")
    A("LA_nogate:")
    for c in range(2):
        for i in range(4):
            r0, r1 = 2*i, 2*i+1
            A(f"v_subrev_f32 v44, s{48+r0}, v{16+2*r0+c}\nv_subrev_f32 v45, s{48+r1}, v{16+2*r1+c}")
            A("v_cvt_pk_bf16_f32 v44, v44, v45\nv_and_b32 v45, 0xffff0000, v44\nv_lshlrev_b32 v44, 16, v44")
            A(f"v_mul_f32 v44, s{56+r0}, v44\nv_mul_f32 v45, s{56+r1}, v45")
            A(f"v_cvt_pk_bf16_f32 v{48+4*c+i}, v44, v45")
        A(f"buffer_store_dwordx4 v[{48+4*c}:{51+4*c}], v59, s[20:23], s69 offen offset:{16*c}")
    A("s_endpgm")
    A("LA_kgen:")
    A(f"s_load_dwordx8 s[12:19], s[0:1], {KA['logA']}\ns_load_dwordx2 s[20:21], s[0:1], {KA['logdt']}\ns_load_dwordx2 s[8:9], s[0:1], {KA['ws']}")
    A("s_sub_u32 s22, s2, 256\ns_mul_i32 s22, s22, 5\ns_add_u32 s22, s22, s3")
    A("s_lshl_b32 s23, s22, 8\nv_lshl_add_u32 v3, v2, 2, s23")
    A(f"s_mul_i32 s24, s3, {KG_WAVE_LDS}")
    sL, sLlo, sLn2, sI, sIlo = 30, 31, 32, 33, 34
    A(f"s_mov_b32 s{sL}, {f32bits(L2E_HI)}\ns_mov_b32 s{sLlo}, {f32bits(L2E_LO)}\ns_mov_b32 s{sLn2}, {f32bits(math.log(2))}\ns_mov_b32 s{sI}, {f32bits(I2P_HI)}\ns_mov_b32 s{sIlo}, {f32bits(I2P_LO)}")
    A("s_mov_b32 s36, 0x46800000\ns_mov_b32 s37, 0x46800000")
    A("s_lshr_b32 s25, s22, 1\ns_lshl_b32 s25, s25, 2")
    A("s_waitcnt lgkmcnt(0)")
    for i in range(4): A(f"global_load_dword v{4+i}, v3, s[{12+2*i}:{13+2*i}]")
    A("s_load_dword s26, s[20:21], s25")
    A(f"s_add_u32 s28, s8, {KR}\ns_addc_u32 s29, s9, 0\ns_lshl_b32 s27, s22, 12\ns_add_u32 s28, s28, s27\ns_addc_u32 s29, s29, 0")
    A("v_lshl_add_u32 v8, v2, 2, s24")
    A("v_and_b32 v9, 15, v2\nv_lshrrev_b32 v10, 4, v2")
    A("v_mul_u32_u24 v11, 272, v9\nv_lshl_add_u32 v11, v10, 4, v11\nv_add_u32 v11, s24, v11")
    A("s_waitcnt lgkmcnt(0)")
    A("s_and_b32 s27, s22, 1\ns_lshl_b32 s27, s27, 4\ns_lshr_b32 s26, s26, s27\ns_lshl_b32 s26, s26, 16")
    A("v_mov_b32 v12, s26")
    A.exp_precise(12, 12, 13, 14, sL, sLlo, sLn2)
    A.bfr(12, 12)
    A("s_waitcnt vmcnt(0)")
    A("v_lshlrev_b32 v13, 16, v6\nv_lshlrev_b32 v14, 16, v7\nv_and_b32 v15, 0x7fff0000, v6\nv_and_b32 v16, 0x7fff0000, v7")
    A("v_max3_f32 v13, |v13|, |v14|, v15\nv_max_f32 v13, v13, v16")
    for ctl in ("quad_perm:[1,0,3,2]", "quad_perm:[2,3,0,1]", "row_half_mirror", "row_mirror"):
        A(f"v_max_f32_dpp v13, v13, v13 {ctl} row_mask:0xf bank_mask:0xf")
    for i in range(4): A(f"v_readlane_b32 s{40+i}, v13, {16*i}")
    A("s_max_u32 s40, s40, s41\ns_max_u32 s42, s42, s43\ns_max_u32 s40, s40, s42\ns_lshr_b32 s40, s40, 23\ns_max_u32 s40, s40, 25\ns_min_u32 s40, s40, 254")
    A("s_sub_u32 s41, 265, s40\ns_lshl_b32 s41, s41, 23")
    A("s_sub_u32 s42, s40, 24\ns_lshl_b32 s42, s42, 23")
    E1, E8, H, F = 40, 42, 44, 46
    ACC = 24
    rowof = {}
    for e in range(8): rowof[(0,e)] = e; rowof[(1,e)] = 8+e
    for n,(i,e) in enumerate([(2,0),(2,4),(3,0),(3,4),(2,2),(2,6),(3,2),(3,6),(4,0),(4,4),(5,0),(5,4),(6,0),(6,4),(7,0),(7,4)]): rowof[(i,e)] = 16+n
    for i in range(8,17): rowof[(i,0)] = 32+i-8
    def cmul(d, x, y):
        return [f"v_pk_mul_f32 v[{d}:{d+1}], v[{x}:{x+1}], v[{y}:{y+1}] op_sel:[0,0] op_sel_hi:[0,1]",
                f"v_pk_fma_f32 v[{d}:{d+1}], v[{x}:{x+1}], v[{y}:{y+1}], v[{d}:{d+1}] op_sel:[1,1,0] op_sel_hi:[1,0,1] neg_lo:[1,0,0]"]
    for p in range(2):
        un = (lambda d, s: f"v_lshlrev_b32 v{d}, 16, v{s}") if p == 0 else (lambda d, s: f"v_and_b32 v{d}, 0xffff0000, v{s}")
        A(un(13,4)); A(un(14,5)); A(un(F,6)); A(un(F+1,7))
        A.exp_precise(13, 13, 15, 16, sL, sLlo, sLn2)
        A(f"v_mul_f32 v14, v14, v12")
        A.bfr(13, 13)
        A(f"v_mul_f32 v15, s{sI}, v14")
        A(f"v_mul_f32 v13, v13, v12")
        A(f"v_fma_f32 v16, v14, s{sI}, -v15")
        A(f"v_mul_f32 v13, s{sL}, v13")
        A(f"v_fma_f32 v16, v14, s{sIlo}, v16")
        A(f"v_mul_f32 v{F}, s41, v{F}\nv_mul_f32 v{F+1}, s41, v{F+1}")
        for n,(q,E) in enumerate(((1,E1),(8,E8),(128,H))):
            m, ph = 17+2*n, 18+2*n
            A(f"v_mul_f32 v{m}, {f32bits(-q)}, v13\nv_mul_f32 v{ph}, {f32bits(q)}, v15")
        for n,(q,E) in enumerate(((1,E1),(8,E8),(128,H))):
            m, ph = 17+2*n, 18+2*n
            A(f"v_exp_f32 v{m}, v{m}\nv_fract_f32 v{ph}, v{ph}")
            A(f"v_fmamk_f32 v{ph}, v16, {f32bits(q)}, v{ph}")
        for n,(q,E) in enumerate(((1,E1),(8,E8),(128,H))):
            m, ph = 17+2*n, 18+2*n
            A(f"v_cos_f32 v{E}, v{ph}\nv_sin_f32 v{E+1}, v{ph}")
        for n,(q,E) in enumerate(((1,E1),(8,E8),(128,H))):
            m = 17+2*n
            A(f"v_mul_f32 v{E}, v{E}, v{m}\nv_mul_f32 v{E+1}, v{E+1}, v{m}")
        def emit(src, row, tmp, neg):
            return [f"v_cvt_pk_f16_f32 v{tmp}, v{src}, {'-' if neg else ''}v{src+1}", f"ds_write_b32 v8, v{tmp} offset:{row*272}"]
        def chain(e, n, pp, tmps):
            out = []; prev = F+2*e
            for i in range(1, n+1):
                d = pp[i % 2]
                out += cmul(d, prev, H) + emit(d, rowof[(i,e)], tmps[i%2], True); prev = d
            return out
        T1 = ["v_mov_b32 v74, 0x7400", f"ds_write_b32 v8, v74 offset:{41*272}",
              f"v_pk_mul_f32 v[62:63], v[{E8}:{E8+1}], s[36:37]"] + emit(62, 42, 75, False)
        prev = 62
        for j in range(2, 16):
            d = 62 + 2*((j+1) % 2)
            T1 += cmul(d, prev, E8) + emit(d, 41+j, 74+(j%2), False); prev = d
        T1 += chain(6, 3, (62,64), (74,75))
        T3 = chain(0, 16, (66,68), (76,77)) + chain(2, 3, (66,68), (76,77))
        T2 = emit(F, 0, 78, True)
        for e in range(1, 8):
            T2 += cmul(F+2*e, F+2*e-2, E1) + emit(F+2*e, e, 78+(e%2), True)
        for n,e in enumerate((1,3,5,7)):
            d = 70+2*(n%2)
            T2 += cmul(d, F+2*e, H) + emit(d, rowof[(1,e)], 78+(n%2), True)
        T2 += chain(4, 7, (70,72), (78,79))
        for i in range(max(len(T1),len(T2),len(T3))):
            for T in (T2, T3, T1):
                if i < len(T): A(T[i])
        A("s_waitcnt lgkmcnt(0)")
        for ks in range(4): A(f"ds_read_b128 v[{80+4*ks}:{83+4*ks}], v11 offset:{41*272+ks*64}")
        for T in range(3):
            for ks in range(4): A(f"ds_read_b128 v[{96+16*T+4*ks}:{99+16*T+4*ks}], v11 offset:{T*16*272+ks*64}")
        for T in range(3):
            A(f"s_waitcnt lgkmcnt({8-4*T})")
            for ks in range(4):
                c = "0" if (p == 0 and ks == 0) else f"v[{ACC+4*T}:{ACC+4*T+3}]"
                A(f"v_mfma_f32_16x16x32_f16 v[{ACC+4*T}:{ACC+4*T+3}], v[{96+16*T+4*ks}:{99+16*T+4*ks}], v[{80+4*ks}:{83+4*ks}], {c}")
    A("v_mul_f32 v12, s42, v12")
    A("v_lshlrev_b32 v13, 5, v9\nv_add_u32 v13, s24, v13")
    A("v_lshrrev_b32 v14, 1, v10\nv_lshlrev_b32 v14, 9, v14\nv_and_b32 v15, 1, v10\nv_lshl_add_u32 v14, v15, 4, v14\nv_add_u32 v14, v14, v13")
    A("v_max_u32 v15, 1, v10\nv_lshlrev_b32 v15, 10, v15\nv_cmp_eq_u32 vcc, 1, v10\nv_cndmask_b32 v16, 0, 8, vcc".replace("v_cndmask_b32 v16, 0, 8, vcc", "v_cndmask_b32_e64 v16, 0, 8, vcc"))
    A("v_add3_u32 v15, v15, v16, v13")
    A("v_lshl_add_u32 v16, v10, 11, v13")
    for i in range(12): A(f"v_mul_f32 v{ACC+i}, v{ACC+i}, v12")
    A(f"ds_write_b128 v14, v[{ACC}:{ACC+3}]")
    A(f"ds_write2_b32 v15, v{ACC+4}, v{ACC+5} offset0:0 offset1:4\nds_write2_b32 v15, v{ACC+6}, v{ACC+7} offset0:128 offset1:132")
    for r in range(4): A(f"ds_write_b32 v16, v{ACC+8+r} offset:{4096+512*r}")
    A("v_lshl_add_u32 v13, v2, 5, s24")
    A("v_sub_u32 v14, 63, v2\nv_lshlrev_b32 v14, 4, v14")
    A("s_waitcnt lgkmcnt(0)")
    A("ds_read_b128 v[40:43], v13\nds_read_b128 v[44:47], v13 offset:16\nds_read_b32 v48, v13 offset:32")
    A("ds_read_b32 v49, v13 offset:2048\nds_read_b32 v50, v13 offset:2064\nds_read_b32 v51, v13 offset:2080")
    A("ds_read_b32 v52, v13 offset:4096\nds_read_b32 v53, v13 offset:4128\nds_read_b32 v54, v13 offset:6144\nds_read_b32 v55, v13 offset:6176")
    A("v_cmp_le_u32 vcc, 32, v2\nv_and_b32 v15, 1, v2\nv_cmp_eq_u32 s[44:45], 1, v15")
    A("s_waitcnt lgkmcnt(0)")
    A("v_cndmask_b32 v41, v41, v40, vcc\nv_cndmask_b32 v43, v43, v44, vcc\nv_cndmask_b32 v45, v45, v44, vcc\nv_cndmask_b32 v47, v47, v48, vcc")
    A("v_cvt_pk_bf16_f32 v56, v47, v46\nv_cvt_pk_bf16_f32 v57, v45, v44\nv_cvt_pk_bf16_f32 v58, v43, v42\nv_cvt_pk_bf16_f32 v59, v41, v40")
    A("global_store_dwordx4 v14, v[56:59], s[28:29] offset:3072")
    A("v_cvt_pk_bf16_f32 v60, v51, v51\nv_cvt_pk_bf16_f32 v61, v50, v50\nv_cvt_pk_bf16_f32 v62, v50, v49\nv_cvt_pk_bf16_f32 v63, v49, v49")
    A("global_store_dwordx4 v14, v[60:63], s[28:29] offset:2048")
    for n,(c,nx) in enumerate(((52,53),(54,55))):
        o = 64+4*n
        A(f"v_cndmask_b32 v40, v{c}, v{nx}, s[44:45]")
        A(f"v_cvt_pk_bf16_f32 v{o}, v{nx}, v{nx}\nv_cvt_pk_bf16_f32 v{o+2}, v{c}, v{c}\nv_cvt_pk_bf16_f32 v{o+1}, v{nx}, v40\nv_mov_b32 v{o+3}, v{o+2}")
        A(f"global_store_dwordx4 v14, v[{o}:{o+3}], s[28:29] offset:{1024*(1-n)}")
    A("LA_end:\ns_endpgm")
    return k.L, 144

ACC0, ACT0, WF0 = 96, 36, 4
VX = 176
def gemm_core(A, which, nsteps, ktot, D=3, rot=None):
    stride = 3456 if which == 1 else 4096
    vW0, vW1, vA0, vA1, vT = VX, VX+1, VX+2, VX+3, VX+4
    t0, t1 = VX+8, VX+9
    A(f"v_lshrrev_b32 v{t0}, 3, v2\nv_mul_u32_u24 v{vW0}, {stride}, v{t0}\nv_and_b32 v{t1}, 7, v2")
    if which == 1:
        A(f"v_and_b32 v{t0}, 2, v{t0}\nv_xor_b32 v{t1}, v{t1}, v{t0}")
        A(f"v_lshl_add_u32 v{vW0}, v{t1}, 4, v{vW0}\nv_xor_b32 v{vW1}, 64, v{vW0}")
    else:
        A(f"v_and_b32 v{t0}, 6, v{t0}\nv_xor_b32 v{t1}, v{t1}, v{t0}")
        A(f"v_lshl_add_u32 v{vW0}, v{t1}, 4, v{vW0}\nv_mov_b32 v{vW1}, v{vW0}")
    A(f"v_lshlrev_b32 v{vA0}, 4, v2\nv_add_u32 v{vA1}, 4096, v{vA0}")
    A("s_lshl_b32 s22, s3, 14")
    A(f"v_lshrrev_b32 v{t0}, 4, v2\nv_bfe_u32 v{t1}, v2, 2, 2")
    A(f"v_lshlrev_b32 v{vT}, {10 if which==1 else 9}, v{t0}\nv_lshl_add_u32 v{vT}, v{t1}, 7, v{vT}")
    A(f"v_and_b32 v{t0}, 1, v{t0}\nv_lshlrev_b32 v{t0}, 1, v{t0}\nv_lshrrev_b32 v{t1}, 1, v{t1}\nv_or_b32 v{t0}, v{t0}, v{t1}")
    A(f"v_lshl_add_u32 v{vT}, v{t0}, 5, v{vT}\nv_and_b32 v{t1}, 3, v2\nv_lshl_add_u32 v{vT}, v{t1}, 3, v{vT}\nv_add_u32 v{t0}, s22, v{vT}")
    for a in range(4):
        A(f"s_add_u32 s23, s3, {a}\ns_and_b32 s23, s23, 3\ns_lshl_b32 s23, s23, 5\nv_xor_b32 v{vT+a}, s23, v{t0}")
    hoff = 512 if which == 1 else 2048
    def step_addr():
        A(f"s_lshl_b32 s26, s21, 2\ns_add_u32 s26, s26, s3")
        if nsteps*4 != ktot:
            A(f"s_cmp_lt_u32 s26, {ktot}\ns_cselect_b32 s18, s40, 0\ns_min_u32 s26, s26, {ktot-1}")
        A(f"s_mul_i32 s24, s26, 5120\ns_mul_i32 s25, s26, {32*stride}\ns_add_u32 s25, s25, s20")
        A(f"s_add_u32 s21, s21, 1\ns_cmp_eq_u32 s21, {nsteps}\ns_cselect_b32 s21, 0, s21")
    def dma(st):
        for i in range(4):
            A(f"s_add_u32 m0, s22, {(st%4)*4096 + i*1024}")
            if i: A(f"s_add_u32 s27, s25, {i*8*stride}")
            else: A("s_nop 0")
            A(f"buffer_load_dwordx4 v{vW1 if i%2 else vW0}, s[12:15], s{27 if i else 25} offen lds")
    def act(st, db):
        r = ACT0 + (st % D)*20 + db*4
        if db < 4: A(f"buffer_load_dwordx4 v[{r}:{r+3}], v{vA0}, s[16:19], s24 offen offset:{db*1024}")
        else: A(f"buffer_load_dwordx4 v[{r}:{r+3}], v{vA1}, s[16:19], s24 offen")
    def trr(st):
        for a in range(4):
            r = WF0 + (st % 2)*16 + a*4
            A(f"ds_read_b64_tr_b16 v[{r}:{r+1}], v{vT+a} offset:{(st%4)*4096}")
            A(f"ds_read_b64_tr_b16 v[{r+2}:{r+3}], v{vT+a} offset:{(st%4)*4096+hoff}")
    for st in range(D):
        step_addr(); dma(st)
        for db in range(5): act(st, db)
    A(f"s_waitcnt vmcnt({5+9*(D-1)})")
    trr(0)
    n = nsteps
    for i in range(n):
        if i+1 < n:
            younger = 5 + 9*max(0, min(i+D-1, n-1) - (i+1))
            A(f"s_waitcnt vmcnt({younger})")
            trr(i+1)
            A("s_waitcnt lgkmcnt(8)")
        else:
            A("s_waitcnt vmcnt(0) lgkmcnt(0)")
        if i+D < n:
            step_addr(); dma(i+D)
        for db in range(5):
            b = ACT0 + (i % D)*20 + db*4
            for a in range(4):
                c = ACC0 + (a*5+db)*4; w = WF0 + (i%2)*16 + a*4
                src = "0" if i == 0 else f"v[{c}:{c+3}]"
                A(f"v_mfma_f32_16x16x32_bf16 v[{c}:{c+3}], v[{w}:{w+3}], v[{b}:{b+3}], {src}")
            if i+D < n: act(i+D, db)
    A(f"v_add_u32 v{t0}, s22, v{vA0}")
    for a in range(1, 4):
        for db in range(5):
            c = ACC0 + (a*5+db)*4
            A(f"ds_write_b128 v{t0}, v[{c}:{c+3}] offset:{((a-1)*5+db)*1024}")
    for a in range(1, 4):
        A(f"s_sub_u32 s23, s3, {a}\ns_and_b32 s23, s23, 3\ns_lshl_b32 s23, s23, 14\nv_add_u32 v{vT+a}, s23, v{vA0}")
    A("s_waitcnt lgkmcnt(0)\ns_barrier")
    for a in range(1, 4):
        for db in range(5):
            r = ACT0 + ((a-1)*5+db)*4
            A(f"ds_read_b128 v[{r}:{r+3}], v{vT+a} offset:{((a-1)*5+db)*1024}")
    for a in range(1, 4):
        A(f"s_waitcnt lgkmcnt({(3-a)*5})")
        for db in range(5):
            r = ACT0 + ((a-1)*5+db)*4; c = ACC0 + db*4
            A(f"v_pk_add_f32 v[{c}:{c+1}], v[{c}:{c+1}], v[{r}:{r+1}]\nv_pk_add_f32 v[{c+2}:{c+3}], v[{c+2}:{c+3}], v[{r+2}:{r+3}]")

CV_WAVE = 13056
U1O, KRO = 4160, 8320
def gen_kb(rot=False, prio=True):
    k = K(); A = k
    A(header("kb_kernel"))
    A("s_cmp_ge_u32 s2, 376\ns_cbranch_scc1 LB_end")
    A(f"s_load_dwordx2 s[4:5], s[0:1], {KA['w1']}\ns_load_dwordx2 s[6:7], s[0:1], {KA['b1']}\ns_load_dwordx2 s[8:9], s[0:1], {KA['ws']}\ns_load_dwordx2 s[10:11], s[0:1], {KA['Dskip']}")
    A("v_lshrrev_b32 v1, 6, v0\nv_and_b32 v2, 63, v0")
    A("v_readfirstlane_b32 s3, v1")
    A("s_and_b32 s34, s2, 7\ns_lshr_b32 s35, s2, 3\ns_lshr_b32 s36, s34, 1")
    A("s_cmp_eq_u32 s36, 3\ns_cselect_b32 s37, 24, 28")
    A("s_cmp_ge_u32 s35, s37\ns_cbranch_scc1 LB_conv")
    if prio: A("s_setprio 1")
    A("s_and_b32 s38, s34, 1\ns_lshl_b32 s38, s38, 2\ns_and_b32 s41, s35, 3\ns_add_u32 s38, s38, s41")
    A("s_mul_i32 s39, s36, 7\ns_lshr_b32 s42, s35, 2\ns_add_u32 s39, s39, s42")
    A("s_lshl_b32 s20, s39, 7")
    if rot: A("s_lshl_b32 s21, s41, 1\ns_add_u32 s21, s21, s42\ns_and_b32 s21, s21, 7\ns_lshl_b32 s21, s21, 1")
    else: A("s_mov_b32 s21, 0")
    A(f"s_mul_i32 s43, s38, {HT_TILE}\ns_mov_b32 s40, {HT_TILE}")
    A("s_waitcnt lgkmcnt(0)")
    A.srd(12, 4, 2048*3456)
    A.srd(16, 8, HT_TILE, "s43")
    vB = VX+10
    A(f"v_lshrrev_b32 v{vB}, 4, v2\nv_lshlrev_b32 v{vB}, 3, v{vB}\ns_lshl_b32 s44, s3, 5\ns_add_u32 s44, s44, s20\nv_add_u32 v{vB}, s44, v{vB}")
    A(f"global_load_dwordx2 v[{vB}:{vB+1}], v{vB}, s[6:7]")
    gemm_core(A, 1, 16, 64)
    A(f"s_mul_i32 s43, s38, {G_TILE}\ns_add_u32 s43, s43, {GO}")
    A.srd(28, 8, G_TILE, "s43")
    A("s_lshl_b32 s44, s39, 1\ns_lshr_b32 s45, s3, 1\ns_add_u32 s44, s44, s45\ns_mul_i32 s44, s44, 5120\ns_and_b32 s45, s3, 1\ns_lshl_b32 s45, s45, 3\ns_add_u32 s44, s44, s45")
    b = 4
    A(f"v_lshlrev_b32 v{b}, 16, v{vB}\nv_and_b32 v{b+1}, 0xffff0000, v{vB}\nv_lshlrev_b32 v{b+2}, 16, v{vB+1}\nv_and_b32 v{b+3}, 0xffff0000, v{vB+1}")
    k0 = math.sqrt(2/math.pi); k1 = 0.044715
    c0 = -2*k0*L2E; c1 = c0*k1
    A(f"s_mov_b32 s46, {f32bits(c1)}\nv_mov_b32 v8, {f32bits(c0)}")
    for db in range(5):
        c = ACC0 + db*4; t = 12 + db*8
        A(f"v_cvt_pk_bf16_f32 v{t}, v{c}, v{c+1}\nv_cvt_pk_bf16_f32 v{t+2}, v{c+2}, v{c+3}")
        A(f"v_and_b32 v{t+1}, 0xffff0000, v{t}\nv_lshlrev_b32 v{t}, 16, v{t}\nv_and_b32 v{t+3}, 0xffff0000, v{t+2}\nv_lshlrev_b32 v{t+2}, 16, v{t+2}")
        A(f"v_pk_add_f32 v[{t}:{t+1}], v[{t}:{t+1}], v[{b}:{b+1}]\nv_pk_add_f32 v[{t+2}:{t+3}], v[{t+2}:{t+3}], v[{b+2}:{b+3}]")
        A(f"v_cvt_pk_bf16_f32 v{t}, v{t}, v{t+1}\nv_cvt_pk_bf16_f32 v{t+2}, v{t+2}, v{t+3}")
        A(f"v_and_b32 v{t+1}, 0xffff0000, v{t}\nv_lshlrev_b32 v{t}, 16, v{t}\nv_and_b32 v{t+3}, 0xffff0000, v{t+2}\nv_lshlrev_b32 v{t+2}, 16, v{t+2}")
        for r in range(4): A(f"v_mul_f32 v{t+4+r}, v{t+r}, v{t+r}")
        for r in range(4): A(f"v_fma_f32 v{t+4+r}, v{t+4+r}, s46, v8")
        for r in range(4): A(f"v_mul_f32 v{t+4+r}, v{t+4+r}, v{t+r}")
        for r in range(4): A(f"v_exp_f32 v{t+4+r}, v{t+4+r}")
        for r in range(4): A(f"v_add_f32 v{t+4+r}, 1.0, v{t+4+r}")
        for r in range(4): A(f"v_rcp_f32 v{t+4+r}, v{t+4+r}")
        for r in range(4): A(f"v_mul_f32 v{t+r}, v{t+4+r}, v{t+r}")
        A(f"v_cvt_pk_bf16_f32 v{t}, v{t}, v{t+1}\nv_cvt_pk_bf16_f32 v{t+1}, v{t+2}, v{t+3}")
        if db < 4: A(f"buffer_store_dwordx2 v[{t}:{t+1}], v{VX+2}, s[28:31], s44 offen offset:{db*1024}")
        else: A(f"buffer_store_dwordx2 v[{t}:{t+1}], v{VX+3}, s[28:31], s44 offen")
    A("s_endpgm")
    A("LB_conv:")
    A("s_mul_i32 s38, s34, 19\ns_cmp_eq_u32 s34, 7\ns_cselect_b32 s39, 4, 0\ns_add_u32 s38, s38, s39\ns_add_u32 s38, s38, s35\ns_sub_u32 s38, s38, s37")
    A("s_lshl_b32 s38, s38, 2\ns_add_u32 s38, s38, s3")
    A(f"s_mul_i32 s22, s3, {CV_WAVE}\ns_lshl_b32 s39, s38, 12")
    A("s_lshr_b32 s41, s38, 1\ns_lshl_b32 s41, s41, 2")
    A("v_lshlrev_b32 v3, 4, v2")
    A("s_waitcnt lgkmcnt(0)")
    A("s_load_dword s42, s[10:11], s41")
    A.srd(12, 8, SZ_X, UT); A.srd(16, 8, SZ_X, KR); A.srd(28, 8, SZ_X, AT)
    A(f"s_add_u32 m0, s22, 32\ns_nop 0")
    for i in range(4): A(f"buffer_load_dwordx4 v3, s[12:15], s39 offen offset:{i*1024} lds")
    A(f"s_add_u32 m0, s22, {KRO}\ns_nop 0")
    for i in range(4): A(f"buffer_load_dwordx4 v3, s[16:19], s39 offen offset:{i*1024} lds")
    A("v_mov_b32 v4, 0\nv_mov_b32 v5, 0\nv_lshlrev_b32 v6, 3, v2\nv_add_u32 v6, s22, v6")
    A(f"ds_write_b64 v6, v[4:5] offset:{KRO+4096}")
    A("s_mov_b64 exec, 0xf\nds_write_b64 v6, v[4:5]\ns_mov_b64 exec, -1")
    A("v_add_u32 v7, s22, v3")
    A("v_and_b32 v8, 15, v2\nv_lshrrev_b32 v9, 4, v2")
    A("v_and_b32 v10, 1, v8\nv_add_u32 v11, v8, v10\nv_lshl_add_u32 v11, v9, 3, v11\nv_lshlrev_b32 v11, 1, v11")
    A(f"v_xor_b32 v10, 1, v10\nv_mul_u32_u24 v10, {U1O}, v10\nv_add3_u32 v12, v11, v10, s22")
    for m in range(1, 4): A(f"v_add_u32 v{12+m}, {1024*m}, v12")
    A(f"v_lshlrev_b32 v16, 4, v9\nv_lshlrev_b32 v17, 5, v8\nv_sub_u32 v16, v16, v17\ns_add_u32 s23, s22, {KRO+480}\nv_add_u32 v16, s23, v16")
    A("v_lshl_add_u32 v17, v9, 3, v17\nv_add_u32 v18, s22, v17")
    A("s_waitcnt vmcnt(4)")
    for i in range(4): A(f"ds_read_b128 v[{24+8*i}:{27+8*i}], v7 offset:{1024*i}\nds_read_b32 v{28+8*i}, v7 offset:{1024*i+16}")
    A("ds_read_b128 v[56:59], v7 offset:4096\nds_read_b32 v60, v7 offset:4112")
    for i in range(5):
        A(f"s_waitcnt lgkmcnt({8-2*i})")
        r = 24+8*i; o = 64+4*i
        for q in range(4): A(f"v_alignbit_b32 v{o+q}, v{r+q+1}, v{r+q}, 16")
        if i == 4: A("s_mov_b64 exec, 3")
        A(f"ds_write_b128 v7, v[{o}:{o+3}] offset:{U1O+1024*i}")
    A("s_mov_b64 exec, -1")
    A("s_and_b32 s43, s38, 1\ns_lshl_b32 s43, s43, 4")
    A("s_waitcnt vmcnt(0) lgkmcnt(0)")
    A("s_lshr_b32 s42, s42, s43\ns_lshl_b32 s42, s42, 16\ns_mov_b32 s43, s42")
    CA, CB, CACC = 24, 56, 152
    def loads(rho):
        s = rho % 2
        out = []
        for x in range(8):
            a = CA + 64*s + 4*x; b = CB + 64*s + 4*x
            o = 128*(x & 1) + 16*rho
            out.append(f"ds_read_b128 v[{b}:{b+3}], v16 offset:{512*(7-x)+64*rho}")
            out.append(f"ds_read2_b32 v[{a}:{a+1}], v{12+(x>>1)} offset0:{o} offset1:{o+1}")
            out.append(f"ds_read2_b32 v[{a+2}:{a+3}], v{12+(x>>1)} offset0:{o+2} offset1:{o+3}")
        return out
    for l in loads(0): A(l)
    for rho in range(8):
        s = rho % 2
        A("s_waitcnt lgkmcnt(0)")
        nxt = loads(rho+1) if rho < 7 else []
        cnt = 0
        for kap in range(8):
            for mt in range(kap, 8):
                a = CA + 64*s + 4*kap; b = CB + 64*s + 4*(mt-kap); c = CACC + 4*mt
                src = "0" if (rho == 0 and kap == 0) else f"v[{c}:{c+3}]"
                A(f"v_mfma_f32_16x16x32_bf16 v[{c}:{c+3}], v[{a}:{a+3}], v[{b}:{b+3}], {src}")
                if cnt < len(nxt): A(nxt[cnt])
                cnt += 1
    for mt in range(8): A(f"ds_read_b64 v[{24+8*mt}:{25+8*mt}], v18 offset:{32+512*mt}")
    for mt in range(8):
        if mt == 0: A("s_waitcnt lgkmcnt(0)")
        t = 24+8*mt; c = CACC+4*mt
        A(f"v_lshlrev_b32 v{t+2}, 16, v{t+1}\nv_and_b32 v{t+3}, 0xffff0000, v{t+1}\nv_and_b32 v{t+1}, 0xffff0000, v{t}\nv_lshlrev_b32 v{t}, 16, v{t}")
        A(f"v_pk_mul_f32 v[{t}:{t+1}], v[{t}:{t+1}], s[42:43]\nv_pk_mul_f32 v[{t+2}:{t+3}], v[{t+2}:{t+3}], s[42:43]")
        A(f"v_cvt_pk_bf16_f32 v{t+4}, v{c}, v{c+1}\nv_cvt_pk_bf16_f32 v{t+6}, v{c+2}, v{c+3}")
        A(f"v_cvt_pk_bf16_f32 v{t}, v{t}, v{t+1}\nv_cvt_pk_bf16_f32 v{t+2}, v{t+2}, v{t+3}")
        A(f"v_and_b32 v{t+5}, 0xffff0000, v{t+4}\nv_lshlrev_b32 v{t+4}, 16, v{t+4}\nv_and_b32 v{t+7}, 0xffff0000, v{t+6}\nv_lshlrev_b32 v{t+6}, 16, v{t+6}")
        A(f"v_and_b32 v{t+1}, 0xffff0000, v{t}\nv_lshlrev_b32 v{t}, 16, v{t}\nv_and_b32 v{t+3}, 0xffff0000, v{t+2}\nv_lshlrev_b32 v{t+2}, 16, v{t+2}")
        A(f"v_pk_add_f32 v[{t}:{t+1}], v[{t}:{t+1}], v[{t+4}:{t+5}]\nv_pk_add_f32 v[{t+2}:{t+3}], v[{t+2}:{t+3}], v[{t+6}:{t+7}]")
        A(f"v_cvt_pk_bf16_f32 v{t}, v{t}, v{t+1}\nv_cvt_pk_bf16_f32 v{t+1}, v{t+2}, v{t+3}")
        A(f"buffer_store_dwordx2 v[{t}:{t+1}], v17, s[28:31], s39 offen offset:{512*mt}")
    A("LB_end:\ns_endpgm")
    return k.L, VX+12

def gen_kc(rot=False):
    k = K(); A = k
    A(header("kc_kernel"))
    A("s_cmp_ge_u32 s2, 256\ns_cbranch_scc1 LC_end")
    A(f"s_load_dwordx2 s[4:5], s[0:1], {KA['w2']}\ns_load_dwordx2 s[6:7], s[0:1], {KA['b2']}\ns_load_dwordx2 s[8:9], s[0:1], {KA['ws']}\ns_load_dwordx2 s[10:11], s[0:1], {KA['out']}")
    A("v_lshrrev_b32 v1, 6, v0\nv_and_b32 v2, 63, v0")
    A("v_readfirstlane_b32 s3, v1")
    A("s_and_b32 s34, s2, 7\ns_lshr_b32 s35, s2, 3\ns_lshr_b32 s36, s34, 1")
    A("s_and_b32 s38, s34, 1\ns_lshl_b32 s38, s38, 2\ns_and_b32 s41, s35, 3\ns_add_u32 s38, s38, s41")
    A("s_lshl_b32 s39, s36, 3\ns_lshr_b32 s42, s35, 2\ns_add_u32 s39, s39, s42")
    A("s_lshl_b32 s20, s39, 7")
    if rot: A("s_lshl_b32 s21, s41, 1\ns_add_u32 s21, s21, s42\ns_and_b32 s21, s21, 7\ns_mul_i32 s21, s21, 7\ns_lshr_b32 s21, s21, 2")
    else: A("s_mov_b32 s21, 0")
    A(f"s_mul_i32 s43, s38, {G_TILE}\ns_add_u32 s43, s43, {GO}\ns_mov_b32 s40, {G_TILE}")
    A("s_lshl_b32 s44, s39, 6\ns_lshl_b32 s45, s3, 4\ns_add_u32 s44, s44, s45")
    A("s_waitcnt lgkmcnt(0)")
    A.srd(12, 4, 1728*4096)
    A.srd(16, 8, G_TILE, "s43")
    A.srd(28, 8, SZ_X, AT)
    A.srd(48, 8, 2048*8, GATE)
    A.srd(52, 10, SZ_X)
    E = VX+10
    A(f"v_lshrrev_b32 v{E+20}, 4, v2\nv_and_b32 v{E+21}, 15, v2")
    A(f"s_lshl_b32 s45, s44, 1\nv_lshl_add_u32 v{E}, v{E+20}, 3, s45")
    A(f"v_lshlrev_b32 v{E+22}, 5, v{E+20}\ns_lshl_b32 s46, s44, 3")
    A(f"v_lshlrev_b32 v{E+23}, 12, v{E+21}\nv_lshl_add_u32 v{E+23}, v{E+20}, 3, v{E+23}")
    A(f"s_mul_i32 s47, s38, {80*4096}\ns_add_u32 s47, s47, s45")
    def epi_loads():
        A(f"global_load_dwordx2 v[{E}:{E+1}], v{E}, s[6:7]")
        A(f"buffer_load_dwordx4 v[{E+2}:{E+5}], v{E+22}, s[48:51], s46 offen\nbuffer_load_dwordx4 v[{E+6}:{E+9}], v{E+22}, s[48:51], s46 offen offset:16")
        for db in range(5):
            A(f"buffer_load_dwordx2 v[{E+10+2*db}:{E+11+2*db}], v{E+23}, s[28:31], s47 offen")
            if db < 4: A("s_add_u32 s47, s47, 65536")
    epi_loads()
    gemm_core(A, 2, 14, 54)
    b = 4
    A(f"v_lshlrev_b32 v{b}, 16, v{E}\nv_and_b32 v{b+1}, 0xffff0000, v{E}\nv_lshlrev_b32 v{b+2}, 16, v{E+1}\nv_and_b32 v{b+3}, 0xffff0000, v{E+1}")
    A(f"s_mul_i32 s45, s3, 2816\ns_add_u32 s45, s45, 65536")
    A(f"v_mul_u32_u24 v8, 704, v{E+20}\nv_lshl_add_u32 v8, v{E+21}, 1, v8\nv_add_u32 v8, s45, v8")
    for db in range(5):
        c = ACC0 + db*4; t = 12 + db*8; a = E+10+2*db
        A(f"v_cvt_pk_bf16_f32 v{t}, v{c}, v{c+1}\nv_cvt_pk_bf16_f32 v{t+2}, v{c+2}, v{c+3}")
        A(f"v_and_b32 v{t+1}, 0xffff0000, v{t}\nv_lshlrev_b32 v{t}, 16, v{t}\nv_and_b32 v{t+3}, 0xffff0000, v{t+2}\nv_lshlrev_b32 v{t+2}, 16, v{t+2}")
        A(f"v_pk_add_f32 v[{t}:{t+1}], v[{t}:{t+1}], v[{b}:{b+1}]\nv_pk_add_f32 v[{t+2}:{t+3}], v[{t+2}:{t+3}], v[{b+2}:{b+3}]")
        A(f"v_cvt_pk_bf16_f32 v{t}, v{t}, v{t+1}\nv_cvt_pk_bf16_f32 v{t+2}, v{t+2}, v{t+3}")
        A(f"v_and_b32 v{t+1}, 0xffff0000, v{t}\nv_lshlrev_b32 v{t}, 16, v{t}\nv_and_b32 v{t+3}, 0xffff0000, v{t+2}\nv_lshlrev_b32 v{t+2}, 16, v{t+2}")
        A(f"v_lshlrev_b32 v{t+4}, 16, v{a}\nv_and_b32 v{t+5}, 0xffff0000, v{a}\nv_lshlrev_b32 v{t+6}, 16, v{a+1}\nv_and_b32 v{t+7}, 0xffff0000, v{a+1}")
        for r in range(4):
            A(f"v_mul_f32 v{t+r}, v{t+r}, v{E+3+2*r}\nv_mul_f32 v{t+4+r}, v{t+4+r}, v{E+2+2*r}")
        A(f"v_cvt_pk_bf16_f32 v{t}, v{t}, v{t+1}\nv_cvt_pk_bf16_f32 v{t+2}, v{t+2}, v{t+3}\nv_cvt_pk_bf16_f32 v{t+4}, v{t+4}, v{t+5}\nv_cvt_pk_bf16_f32 v{t+6}, v{t+6}, v{t+7}")
        for q in (0, 2, 4, 6): A(f"v_and_b32 v{t+q+1}, 0xffff0000, v{t+q}\nv_lshlrev_b32 v{t+q}, 16, v{t+q}")
        A(f"v_pk_add_f32 v[{t}:{t+1}], v[{t}:{t+1}], v[{t+4}:{t+5}]\nv_pk_add_f32 v[{t+2}:{t+3}], v[{t+2}:{t+3}], v[{t+6}:{t+7}]")
        A(f"v_cvt_pk_bf16_f32 v{t}, v{t}, v{t+1}\nv_cvt_pk_bf16_f32 v{t+1}, v{t+2}, v{t+3}")
        A(f"ds_write_b16 v8, v{t} offset:{32*db}\nds_write_b16_d16_hi v8, v{t} offset:{32*db+176}")
        A(f"ds_write_b16 v8, v{t+1} offset:{32*db+352}\nds_write_b16_d16_hi v8, v{t+1} offset:{32*db+528}")
    A(f"s_mul_i32 s46, s44, 1280\ns_mul_i32 s47, s38, 160\ns_add_u32 s46, s46, s47")
    for i in range(3):
        c, row, col = 56+4*i, 57+4*i, 58+4*i
        A(f"v_add_u32 v{c}, {64*i}, v2\nv_mul_u32_u24 v{row}, 205, v{c}\nv_lshrrev_b32 v{row}, 11, v{row}")
        A(f"v_mul_u32_u24 v{col}, 10, v{row}\nv_sub_u32 v{col}, v{c}, v{col}\nv_lshlrev_b32 v{col}, 4, v{col}")
        A(f"v_mul_u32_u24 v{c}, 176, v{row}\nv_add3_u32 v{c}, v{c}, v{col}, s45")
        A(f"v_mul_u32_u24 v{row}, 1280, v{row}\nv_add_u32 v{row}, v{row}, v{col}")
    A("s_waitcnt lgkmcnt(0)")
    A("ds_read_b128 v[72:75], v56\nds_read_b128 v[76:79], v60")
    A("s_mov_b32 exec_hi, 0\nds_read_b128 v[80:83], v64\ns_mov_b64 exec, -1")
    A("s_waitcnt lgkmcnt(2)\nbuffer_store_dwordx4 v[72:75], v57, s[52:55], s46 offen")
    A("s_waitcnt lgkmcnt(1)\nbuffer_store_dwordx4 v[76:79], v61, s[52:55], s46 offen")
    A("s_waitcnt lgkmcnt(0)\ns_mov_b32 exec_hi, 0\nbuffer_store_dwordx4 v[80:83], v65, s[52:55], s46 offen")
    A("LC_end:\ns_endpgm")
    return k.L, E+24

def build(prefetch=True, rotb=False, rotc=False, prio=True, extra_empty=0):
    ref = open(f"cdna_kernels/{NAME}.s.ref").read().split("\n")
    head = [l for l in ref if l.startswith(";") and "@launch" not in l and "Override launch" not in l and "grid=ceil" not in l]
    out = head[:]
    out.append(f"; @launch kernel=ka_kernel grid=(384,1,1) block=(320,1,1) lds={5*KG_WAVE_LDS}")
    for i in range(extra_empty): out.append(f"; @launch kernel=kx_kernel grid=(256,1,1) block=(256,1,1) lds=0")
    out.append(f"; @launch kernel=kb_kernel grid=(376,1,1) block=(256,1,1) lds=65536")
    out.append(f"; @launch kernel=kc_kernel grid=(256,1,1) block=(256,1,1) lds={65536+4*2816}")
    out.append('.amdgcn_target "amdgcn-amd-amdhsa--gfx950"\n.text')
    descs = []
    for name, (L, nv) in (("ka_kernel", gen_ka(prefetch)), ("kb_kernel", gen_kb(rotb, prio)), ("kc_kernel", gen_kc(rotc))):
        out += fix_hazards(L); descs.append(kdesc(name, nv))
    if extra_empty:
        out.append(header("kx_kernel") + "\ns_endpgm"); descs.append(kdesc("kx_kernel", 8))
    out.append('.section .rodata,"a"')
    out += descs
    return "\n".join(out) + "\n"

if __name__ == "__main__":
    path = sys.argv[1] if len(sys.argv) > 1 else f"cdna_kernels/{NAME}.s"
    kw = eval("dict(%s)" % sys.argv[2]) if len(sys.argv) > 2 else {}
    open(path, "w").write(build(**kw))
```

```python
import math, struct, sys
from asmlib import *
import numpy as np

NAME = "gated_mix__ssm_conv_s4d__mixer_token_mlp__prompt"
KN = NAME + "_kernel"
HU, GO, AT, GATE, STA, FL = 0, 0x500000, 0x780000, 0xA00000, 0xB00000, 0xC00000
F1, F2, F3, FLSZ = 0x1000, 0x10000, 0x20000, 0x40000
SZ_X = 2048*640*2
L2E = 1.4426950408889634
L2E_HI = float(np.float32(L2E)); L2E_LO = L2E - L2E_HI
I2P = 1/(2*math.pi)
I2P_HI = float(np.float32(I2P)); I2P_LO = I2P - I2P_HI
pU, pLA, pAI, pCR, pCI, pLDT, pDS = 36, 38, 40, 42, 44, 46, 48
pW1, pB1, pW2, pB2, pGW, pOUT, pDBG, pWS = 52, 54, 56, 58, 60, 62, 64, 66
sTAG, sX, sJ, sDT, sNT = 6, 8, 9, 10, 11
sLB = 7
sPH = 4
sBAR = 5
CREG = 131072; CSZ = 57*272
SYNC = CREG + 2*CSZ + 96
LDS_TOTAL = 163840
STG = 24576
U1O, KRO = 4160, 8320
WF0, ACT0, ACC0 = 4, 36, 116
vW0, vW1, vA0, vA1, vT = 196, 197, 198, 199, 200
t0, t1 = 204, 205
E = 206
vSY = 230
SPIN = 1 << 18

class K:
    def __init__(self, stamp): self.L = []; self.stamp = stamp; self.nl = 0
    def __call__(self, s): self.L.append(s)
    def lab(self, p): self.nl += 1; return f"L{p}{self.nl}"
    def srd(self, d, base, size, off=None):
        if off is None:
            self(f"s_mov_b32 s{d}, s{base}\ns_and_b32 s{d+1}, s{base+1}, 0xffff")
        else:
            self(f"s_add_u32 s{d}, s{base}, {off}\ns_addc_u32 s{d+1}, s{base+1}, 0\ns_and_b32 s{d+1}, s{d+1}, 0xffff")
        self(f"s_mov_b32 s{d+2}, {size}\ns_mov_b32 s{d+3}, 0x20000")
    def bfr(self, dst, src):
        self(f"v_cvt_pk_bf16_f32 v{dst}, v{src}, v{src}\nv_and_b32 v{dst}, 0xffff0000, v{dst}")
    def exp_precise(self, dst, x, t, r, sL, sLlo, sLn2):
        self(f"v_mul_f32 v{t}, s{sL}, v{x}\nv_fma_f32 v{r}, v{x}, s{sL}, -v{t}\nv_fma_f32 v{r}, v{x}, s{sLlo}, v{r}")
        self(f"v_exp_f32 v{t}, v{t}\nv_mul_f32 v{r}, s{sLn2}, v{r}\nv_fma_f32 v{dst}, v{t}, v{r}, v{t}")
    def st(self, i):
        if self.stamp: self(f"s_memrealtime s[{86+2*i}:{87+2*i}]")
    def st_end(self):
        if not self.stamp: return
        A = self
        A("s_waitcnt vmcnt(0)\ns_memrealtime s[100:101]\ns_waitcnt lgkmcnt(0)")
        A(f"s_lshl_b32 s68, s2, 3\ns_add_u32 s68, s68, s3\ns_lshl_b32 s68, s68, 5\ns_add_u32 s68, s68, {STA}")
        A("s_mov_b64 exec, 1")
        for i in range(8): A(f"v_mov_b32 v{4+i}, s{86+2*i}")
        A(f"v_mov_b32 v3, s68\nglobal_store_dwordx4 v3, v[4:7], s[{pWS}:{pWS+1}]\nglobal_store_dwordx4 v3, v[8:11], s[{pWS}:{pWS+1}] offset:16")
    def arrive(self, word, tmp):
        self(f"s_mov_b64 exec, 1\nv_mov_b32 v{tmp}, 1\nds_add_u32 v{vSY}, v{tmp} offset:{4*word}\ns_mov_b64 exec, -1")
    def waitge(self, word, target, tmp, sleep=0):
        l = self.lab("w"); e = self.lab("e")
        self(f"s_mov_b32 s69, 0\n{l}:\nds_read_b32 v{tmp}, v{vSY} offset:{4*word}\ns_add_u32 s69, s69, 1\ns_waitcnt lgkmcnt(0)\nv_readfirstlane_b32 s68, v{tmp}")
        self(f"s_cmp_ge_u32 s68, {target}\ns_cbranch_scc1 {e}")
        if sleep: self(f"s_sleep {sleep}")
        self(f"s_cmp_lt_u32 s69, {SPIN}\ns_cbranch_scc1 {l}\n{e}:")
    def gbar(self, tmp):
        self(f"s_add_u32 s{sBAR}, s{sBAR}, 4")
        self.arrive(0, tmp); self.waitge(0, f"s{sBAR}", tmp)
    def poll(self, loads, regs_):
        l = self.lab("p"); e = self.lab("q")
        self(f"s_mov_b32 s69, 0\n{l}:")
        for (va, so), r in zip(loads, regs_): self(f"buffer_load_dword v{r}, v{va}, s[24:27], {so} offen sc1")
        self("s_add_u32 s69, s69, 1\ns_waitcnt vmcnt(0)")
        for r in regs_: self(f"v_xor_b32 v{r}, s{sTAG}, v{r}")
        for r in regs_[1:]: self(f"v_or_b32 v{regs_[0]}, v{regs_[0]}, v{r}")
        self(f"v_cmp_ne_u32 vcc, 0, v{regs_[0]}\ns_cbranch_vccz {e}\ns_cmp_lt_u32 s69, {SPIN>>4}\ns_cbranch_scc1 {l}\n{e}:")
    def setflag(self, soff, tmp):
        self(f"s_mov_b64 exec, 1\nv_mov_b32 v{tmp}, s{sTAG}\nv_mov_b32 v{tmp+1}, 0\nbuffer_store_dword v{tmp}, v{tmp+1}, s[24:27], {soff} offen sc1\ns_mov_b64 exec, -1")

sA, sAstep, sAend, sAsz = 70, 71, 72, 73
sW, sWstep, sWend, sW8 = 74, 75, 76, 77
sM, sIt, sN = 78, 79, 80
def dma_step(A, slot_imm=None):
    for i in range(4):
        A(f"s_add_u32 m0, s{sM}, {(slot_imm or 0) + i*1024}")
        if i == 0: A("s_nop 0")
        elif i == 1: A(f"s_add_u32 s81, s{sW}, s{sW8}")
        else: A(f"s_add_u32 s81, s81, s{sW8}")
        A(f"buffer_load_dwordx4 v{vW1 if i%2 else vW0}, s[12:15], s{81 if i else sW} offen lds")
    A(f"s_add_u32 s{sW}, s{sW}, s{sWstep}")
def w_setup(A, ptr, stride, ktot):
    A.srd(12, ptr, 7077888)
    A(f"v_lshrrev_b32 v{t0}, 3, v2\nv_mul_u32_u24 v{vW0}, {stride}, v{t0}\nv_and_b32 v{t1}, 7, v2")
    A(f"v_and_b32 v{t0}, 2, v{t0}\nv_xor_b32 v{t1}, v{t1}, v{t0}")
    A(f"v_lshl_add_u32 v{vW0}, v{t1}, 4, v{vW0}\nv_xor_b32 v{vW1}, 64, v{vW0}")
    A(f"s_mul_i32 s{sW}, s3, {32*stride}\ns_lshl_b32 s81, s{sNT}, 7\ns_add_u32 s{sW}, s{sW}, s81")
    A(f"s_mov_b32 s{sWstep}, {128*stride}\ns_mov_b32 s{sWend}, {ktot*32*stride}\ns_mov_b32 s{sW8}, {8*stride}")

def build(stamp=False, touch1=True, touch2=True, codetouch=True, prio=True, npre=4):
    A = K(stamp)
    A(f".globl {KN}\n.p2align 8\n.type {KN},@function\n{KN}:")
    A("s_cmp_ge_u32 s2, 256\ns_cbranch_scc1 L_end")
    A.st(0)
    A("s_load_dwordx16 s[36:51], s[0:1], 0\ns_load_dwordx16 s[52:67], s[0:1], 64")
    A("v_lshrrev_b32 v1, 6, v0\nv_and_b32 v2, 63, v0")
    A(f"v_mov_b32 v{vSY}, {SYNC}\nv_mov_b32 v4, 0\nv_mov_b32 v5, 0")
    A("v_readfirstlane_b32 s3, v1")
    A(f"ds_write_b64 v{vSY}, v[4:5]\nds_write_b64 v{vSY}, v[4:5] offset:8")
    A(f"s_and_b32 s{sX}, s2, 7\ns_lshr_b32 s{sJ}, s2, 3\ns_mov_b32 s{sBAR}, 0")
    A(f"s_and_b32 s{sDT}, s{sX}, 1\ns_lshl_b32 s{sDT}, s{sDT}, 2\ns_and_b32 s68, s{sJ}, 3\ns_add_u32 s{sDT}, s{sDT}, s68")
    A(f"s_lshr_b32 s82, s{sX}, 1\ns_cmp_eq_u32 s82, 3\ns_cselect_b32 s83, 24, 28")
    A(f"s_cmp_lt_u32 s{sJ}, s83\ns_cselect_b32 s{sPH}, 0, 1")
    A("s_cmp_ge_u32 s3, 4\ns_cbranch_scc1 L_cwave")
    if prio: A("s_setprio 1")
    A(f"s_lshl_b32 s{sLB}, s3, 15")
    A(f"s_lshl_b32 s84, s{sX}, 5\ns_add_u32 s84, s84, s{sJ}")
    A("s_lshl_b32 s85, s84, 3\ns_lshl_b32 s68, s3, 1\ns_add_u32 s85, s85, s68")
    A("s_mul_i32 s68, s85, 1280")
    A("v_lshlrev_b32 v14, 4, v2\nv_lshlrev_b32 v15, 2, v2\nv_add_u32 v15, 1024, v15")
    A("s_waitcnt lgkmcnt(0)")
    A.srd(28, pU, SZ_X)
    A("buffer_load_dwordx4 v[4:7], v14, s[28:31], s68 offen\nbuffer_load_dword v12, v15, s[28:31], s68 offen")
    A("buffer_load_dwordx4 v[8:11], v14, s[28:31], s68 offen offset:1280\nbuffer_load_dword v13, v15, s[28:31], s68 offen offset:1280")
    A(f"global_load_dwordx4 v[16:19], v14, s[{pGW}:{pGW+1}]\nglobal_load_dword v20, v15, s[{pGW}:{pGW+1}]")
    A.srd(24, pWS, FLSZ, FL)
    A("v_mov_b32 v21, 0\nbuffer_load_dword v21, v21, s[24:27], 0 offen sc1")
    A("s_barrier")
    A(f"s_mul_i32 s{sNT}, s82, 7\ns_lshr_b32 s68, s{sJ}, 2\ns_add_u32 s{sNT}, s{sNT}, s68")
    w_setup(A, pW1, 3456, 64)
    A(f"s_mov_b32 s{sM}, s{sLB}")
    A(f"s_cmp_lg_u32 s{sPH}, 0\ns_cbranch_scc1 L_nopre1")
    for s in range(npre): dma_step(A, s*4096)
    A(f"s_waitcnt vmcnt({4*npre})\ns_branch L_ln")
    A("L_nopre1:\ns_waitcnt vmcnt(0)")
    A("L_ln:")
    A.st(1)
    X = (24, 34); GW = 44
    src = ((4,5,6,7,12), (8,9,10,11,13))
    for q in range(2):
        for i in range(5): A(f"v_lshlrev_b32 v{X[q]+2*i}, 16, v{src[q][i]}\nv_and_b32 v{X[q]+2*i+1}, 0xffff0000, v{src[q][i]}")
    for i, r in enumerate((16,17,18,19,20)): A(f"v_lshlrev_b32 v{GW+2*i}, 16, v{r}\nv_and_b32 v{GW+2*i+1}, 0xffff0000, v{r}")
    A(f"v_readfirstlane_b32 s{sTAG}, v21")
    A(f"v_readlane_b32 s68, v{X[0]}, 0\nv_readlane_b32 s70, v{X[1]}, 0")
    A(f"s_add_u32 s{sTAG}, s{sTAG}, 1\ns_mov_b32 s69, s68\ns_mov_b32 s71, s70")
    A(f"s_and_b32 s72, s3, 1\ns_lshl_b32 s72, s72, 7\ns_add_u32 s72, s72, s{sLB}\ns_add_u32 s72, s72, {STG}")
    A("v_add_u32 v22, s72, v14\nv_add_u32 v23, s72, v15")
    A("ds_write_b128 v22, v[4:7] offset:2816\nds_write_b32 v23, v12 offset:2816\nds_write_b128 v22, v[8:11] offset:4160\nds_write_b32 v23, v13 offset:4160")
    for q in range(2):
        D = 54 + 20*q; T = 64 + 20*q; c = 68 + 2*q
        for i in range(5): A(f"v_pk_add_f32 v[{D+2*i}:{D+2*i+1}], v[{X[q]+2*i}:{X[q]+2*i+1}], s[{c}:{c+1}] neg_lo:[0,1] neg_hi:[0,1]")
        for i in range(5): A(f"v_pk_mul_f32 v[{T+2*i}:{T+2*i+1}], v[{X[q]+2*i}:{X[q]+2*i+1}], v[{GW+2*i}:{GW+2*i+1}]")
    for q in range(2):
        D = 54 + 20*q; T = 64 + 20*q; S = 94 + 6*q
        A(f"v_pk_mul_f32 v[{S+2}:{S+3}], v[{D}:{D+1}], v[{D}:{D+1}]\nv_pk_add_f32 v[{S}:{S+1}], v[{D}:{D+1}], v[{D+2}:{D+3}]")
        for i in range(5): A(f"v_cvt_pk_bf16_f32 v{T+2*i}, v{T+2*i}, v{T+2*i+1}")
        for i in range(1, 5):
            A(f"v_pk_fma_f32 v[{S+2}:{S+3}], v[{D+2*i}:{D+2*i+1}], v[{D+2*i}:{D+2*i+1}], v[{S+2}:{S+3}]")
            if i >= 2: A(f"v_pk_add_f32 v[{S}:{S+1}], v[{S}:{S+1}], v[{D+2*i}:{D+2*i+1}]")
        for i in range(5): A(f"v_and_b32 v{T+2*i+1}, 0xffff0000, v{T+2*i}\nv_lshlrev_b32 v{T+2*i}, 16, v{T+2*i}")
        A(f"v_pk_add_f32 v[{S+4}:{S+5}], v[{T}:{T+1}], v[{T+2}:{T+3}]\nv_pk_add_f32 v[{T+4}:{T+5}], v[{T+4}:{T+5}], v[{T+6}:{T+7}]")
        A(f"v_pk_add_f32 v[{S+4}:{S+5}], v[{S+4}:{S+5}], v[{T+8}:{T+9}]\nv_pk_add_f32 v[{S+4}:{S+5}], v[{S+4}:{S+5}], v[{T+4}:{T+5}]")
    for q in range(2):
        for n in range(3): A(f"v_add_f32 v{106+2*n+q}, v{94+6*q+2*n}, v{95+6*q+2*n}")
    for n in range(3): A(f"v_permlane32_swap_b32 v{106+2*n}, v{107+2*n}")
    for n in range(3): A(f"v_add_f32 v{106+2*n}, v{106+2*n}, v{107+2*n}")
    for ctl in ("quad_perm:[1,0,3,2]", "quad_perm:[2,3,0,1]", "row_half_mirror", "row_mirror"):
        for n in range(3): A(f"v_add_f32_dpp v{106+2*n}, v{106+2*n}, v{106+2*n} {ctl} row_mask:0xf bank_mask:0xf")
    for n in range(3): A(f"v_mov_b32 v{107+2*n}, v{106+2*n}")
    A("v_mov_b32 v112, s68\ns_mov_b32 exec_lo, 0\nv_mov_b32 v112, s70\ns_mov_b32 exec_lo, -1")
    for n in range(3): A(f"v_permlane16_swap_b32 v{106+2*n}, v{107+2*n}")
    for n in range(3): A(f"v_add_f32 v{106+2*n}, v{106+2*n}, v{107+2*n}")
    inv = f32bits(1/640)
    A(f"v_mul_f32 v106, {inv}, v106\nv_mul_f32 v108, {inv}, v108")
    A("v_fma_f32 v108, -v106, v106, v108\nv_add_f32 v106, v106, v112\nv_max_f32 v108, 0, v108")
    A.bfr(110, 110); A.bfr(108, 108); A.bfr(106, 106)
    A(f"v_add_f32 v108, {f32bits(1e-5)}, v108\nv_mul_f32 v110, {f32bits(-L2E)}, v110")
    A.bfr(108, 108)
    A("v_exp_f32 v110, v110\nv_sqrt_f32 v108, v108\nv_readlane_b32 s68, v106, 0\nv_readlane_b32 s70, v106, 32")
    A("v_add_f32 v110, 1.0, v110")
    A.bfr(108, 108)
    A("v_rcp_f32 v110, v110\nv_rcp_f32 v108, v108\ns_mov_b32 s69, s68\ns_mov_b32 s71, s70")
    for q in range(2):
        D = 54 + 20*q; c = 68 + 2*q
        for i in range(5): A(f"v_pk_add_f32 v[{D+2*i}:{D+2*i+1}], v[{X[q]+2*i}:{X[q]+2*i+1}], s[{c}:{c+1}] neg_lo:[0,1] neg_hi:[0,1]")
    A("v_readlane_b32 s68, v108, 0\nv_readlane_b32 s70, v108, 32")
    A.bfr(112, 110)
    for q in range(2):
        D = 54 + 20*q
        for i in range(5): A(f"v_cvt_pk_bf16_f32 v{D+2*i}, v{D+2*i}, v{D+2*i+1}")
    A("s_mov_b32 s69, s68\ns_mov_b32 s71, s70\nv_sub_f32 v113, 1.0, v112")
    for q in range(2):
        D = 54 + 20*q
        for i in range(5): A(f"v_and_b32 v{D+2*i+1}, 0xffff0000, v{D+2*i}\nv_lshlrev_b32 v{D+2*i}, 16, v{D+2*i}")
    A.bfr(113, 113)
    for q in range(2):
        D = 54 + 20*q; c = 68 + 2*q
        for i in range(5): A(f"v_pk_mul_f32 v[{D+2*i}:{D+2*i+1}], v[{D+2*i}:{D+2*i+1}], s[{c}:{c+1}]")
    for q in range(2):
        D = 54 + 20*q; H = 24 + 6*q
        for i in range(5): A(f"v_cvt_pk_bf16_f32 v{H+i}, v{D+2*i}, v{D+2*i+1}")
        A(f"ds_write_b128 v22, v[{H}:{H+3}] offset:{1344*q}\nds_write_b32 v23, v{H+4} offset:{1344*q}")
    A.arrive(0, 36)
    A("v_lshrrev_b32 v37, 4, v2\nv_bfe_u32 v38, v2, 2, 2\nv_and_b32 v39, 3, v2\nv_and_b32 v40, 15, v2")
    A(f"v_lshrrev_b32 v41, 1, v38\nv_mul_u32_u24 v41, {32768+128}, v41\nv_and_b32 v42, 1, v38\nv_mul_u32_u24 v42, 1344, v42")
    A(f"s_lshl_b32 s72, s3, 7\ns_add_u32 s72, s72, {STG}\nv_add3_u32 v41, v41, v42, s72\nv_lshl_add_u32 v41, v37, 5, v41\nv_lshl_add_u32 v41, v39, 3, v41")
    A("v_add_u32 v42, 0x10000, v41")
    A("s_cmp_ge_u32 s3, 2\ns_cselect_b32 s72, 1536, 0\nv_add_u32 v43, s72, v41\nv_add_u32 v44, s72, v42")
    A("s_lshl_b32 s72, s3, 12\nv_lshlrev_b32 v45, 10, v37\nv_lshl_add_u32 v45, v40, 4, v45\nv_add_u32 v45, s72, v45")
    A("s_lshr_b32 s72, s84, 2\ns_mul_i32 s72, s72, 81920\ns_and_b32 s73, s84, 3\ns_lshl_b32 s73, s73, 8\ns_add_u32 s72, s72, s73")
    A.srd(20, pWS, 0x500000, HU)
    A.srd(32, pWS, 2048*8, GATE)
    A("v_lshrrev_b32 v46, 5, v2\nv_lshlrev_b32 v46, 3, v46\ns_lshl_b32 s73, s85, 3")
    A("s_mov_b32 exec_lo, 1\ns_mov_b32 exec_hi, 1\nbuffer_store_dwordx2 v[112:113], v46, s[32:35], s73 offen sc1\ns_mov_b64 exec, -1")
    A(f"s_add_u32 s{sBAR}, s{sBAR}, 4")
    A.waitge(0, f"s{sBAR}", 36)
    for i in range(5):
        a0, a1 = (43, 44) if i == 2 else (41, 42)
        off = i*512 + (1536 if i >= 3 else 0)
        A(f"ds_read_b64_tr_b16 v[{48+4*i}:{49+4*i}], v{a0} offset:{off}\nds_read_b64_tr_b16 v[{50+4*i}:{51+4*i}], v{a1} offset:{off}")
    for i in range(5):
        A(f"s_waitcnt lgkmcnt({8-2*i})\nbuffer_store_dwordx4 v[{48+4*i}:{51+4*i}], v45, s[20:23], s72 offen sc1")
        if i < 4: A("s_add_u32 s72, s72, 16384")
    A.st(2)
    A(f"s_cmp_lg_u32 s{sPH}, 0\ns_cbranch_scc1 L_nopre2")
    for s in range(npre, 6): dma_step(A, s*4096)
    A(f"s_waitcnt vmcnt({4*(6-npre)})\ns_branch L_acked")
    A("L_nopre2:\ns_waitcnt vmcnt(0)")
    A("L_acked:")
    A.gbar(36)
    A("s_cmp_lg_u32 s3, 0\ns_cbranch_scc1 L_noflag1")
    A(f"s_lshl_b32 s72, s84, 7\ns_add_u32 s72, s72, {F1}")
    A.setflag("s72", 36)
    A("L_noflag1:")
    A(f"v_lshlrev_b32 v{vA0}, 4, v2\nv_add_u32 v{vA1}, 4096, v{vA0}")
    A(f"v_lshrrev_b32 v{t0}, 4, v2\nv_bfe_u32 v{t1}, v2, 2, 2")
    A(f"v_lshlrev_b32 v{vT}, 10, v{t0}\nv_lshl_add_u32 v{vT}, v{t1}, 7, v{vT}")
    A(f"v_and_b32 v{t0}, 1, v{t0}\nv_lshlrev_b32 v{t0}, 1, v{t0}\nv_lshrrev_b32 v{t1}, 1, v{t1}\nv_or_b32 v{t0}, v{t0}, v{t1}")
    A(f"v_lshl_add_u32 v{vT}, v{t0}, 5, v{vT}\nv_and_b32 v{t1}, 3, v2\nv_lshl_add_u32 v{vT}, v{t1}, 3, v{vT}\nv_add_u32 v{t0}, s{sLB}, v{vT}")
    for a in range(4):
        A(f"s_add_u32 s68, s3, {a}\ns_and_b32 s68, s68, 3\ns_lshl_b32 s68, s68, 5\nv_xor_b32 v{vT+a}, s68, v{t0}")
    A(f"s_cmp_lg_u32 s{sPH}, 0\ns_cbranch_scc1 L_freecu")
    for s in (6, 7): dma_step(A, s*4096)
    if touch1:
        A(f"s_and_b32 s68, s{sJ}, 3\ns_lshl_b32 s68, s68, 1\ns_mul_i32 s68, s68, s{sWstep}\ns_add_u32 s68, s68, s{sW}")
        A(f"v_lshrrev_b32 v36, 5, v2\nv_mul_u32_u24 v36, {128*3456}, v36\nv_and_b32 v37, 31, v2\nv_mul_u32_u24 v37, 3456, v37\nv_add_u32 v36, v36, v37")
        A("buffer_load_dword v231, v36, s[12:15], s68 offen")
    A(f"v_lshrrev_b32 v{E}, 4, v2\nv_lshlrev_b32 v{E}, 3, v{E}\ns_lshl_b32 s68, s3, 5\ns_lshl_b32 s69, s{sNT}, 7\ns_add_u32 s68, s68, s69\nv_add_u32 v{E}, s68, v{E}")
    A(f"global_load_dwordx2 v[{E}:{E+1}], v{E}, s[{pB1}:{pB1+1}]")
    A(f"s_mul_i32 s68, s{sDT}, 5120")
    A.srd(16, pWS, 0x500000, "s68")
    A(f"s_mul_i32 s{sA}, s3, 81920\ns_mov_b32 s{sAstep}, {4*81920}\ns_mov_b32 s{sAend}, {64*81920}\ns_mov_b32 s{sAsz}, 0x500000\ns_mov_b32 s{sN}, 16")
    def waitF1():
        l1 = A.lab("f"); l2 = A.lab("f")
        A(f"s_cmp_lg_u32 s3, 0\ns_cbranch_scc1 {l1}")
        A(f"v_lshlrev_b32 v36, 7, v2\ns_mov_b32 s51, {F1}\ns_mov_b32 s50, {F1+8192}\ns_mov_b32 s84, {F1+16384}\ns_mov_b32 s85, {F1+24576}")
        A.poll([(36, "s51"), (36, "s50"), (36, "s84"), (36, "s85")], [40, 41, 42, 43])
        A(f"v_mov_b32 v36, s{sTAG}\nds_write_b32 v{vSY}, v36 offset:12")
        A.arrive(1, 36)
        A(f"s_cmp_lg_u32 s2, 0\ns_cbranch_scc1 {l2}")
        A.setflag("0", 36)
        A(f"s_branch {l2}\n{l1}:")
        A.waitge(1, 1, 36, sleep=1)
        A(f"ds_read_b32 v36, v{vSY} offset:12\ns_waitcnt lgkmcnt(0)\nv_readfirstlane_b32 s{sTAG}, v36")
        A(f"{l2}:")
    A("L_waitf1:")
    waitF1()
    A.st(3)
    A(f"s_cmp_lg_u32 s{sPH}, 0\ns_cbranch_scc1 L_chan_ret")
    A("L_gemm:")
    def act_addr():
        A(f"s_cmp_lt_u32 s{sA}, s{sAend}\ns_cselect_b32 s18, s{sAsz}, 0")
    def act(stage, db):
        r = ACT0 + stage*20 + db*4
        if db < 4: A(f"buffer_load_dwordx4 v[{r}:{r+3}], v{vA0}, s[16:19], s{sA} offen offset:{db*1024} sc1")
        else: A(f"buffer_load_dwordx4 v[{r}:{r+3}], v{vA1}, s[16:19], s{sA} offen sc1\ns_add_u32 s{sA}, s{sA}, s{sAstep}")
    def trr(buf, slot):
        for a in range(4):
            r = WF0 + buf*16 + a*4
            A(f"ds_read_b64_tr_b16 v[{r}:{r+1}], v{vT+a} offset:{slot*4096}\nds_read_b64_tr_b16 v[{r+2}:{r+3}], v{vT+a} offset:{slot*4096+512}")
    for st in range(4):
        act_addr()
        for db in range(5): act(st, db)
    for i in range(80): A(f"v_mov_b32 v{ACC0+i}, 0")
    A(f"s_mov_b32 s{sIt}, 0\ns_waitcnt vmcnt(20)")
    trr(0, 0)
    A(".p2align 3\nL_loop:")
    for u in range(4):
        A("s_waitcnt vmcnt(15)")
        if u == 3:
            for a in range(4): A(f"v_xor_b32 v{vT+a}, 0x4000, v{vT+a}")
        trr((u+1) % 2, (u+1) % 4)
        sk = A.lab("s")
        A(f"s_cmp_lt_u32 s{sW}, s{sWend}\ns_waitcnt lgkmcnt(8)\ns_cbranch_scc0 {sk}")
        dma_step(A, u*4096)
        A(f"{sk}:")
        act_addr()
        for db in range(5):
            b = ACT0 + u*20 + db*4
            for a in range(4):
                c = ACC0 + (a*5+db)*4; w = WF0 + (u%2)*16 + a*4
                A(f"v_mfma_f32_16x16x32_bf16 v[{c}:{c+3}], v[{w}:{w+3}], v[{b}:{b+3}], v[{c}:{c+3}]")
            act(u, db)
        if u == 1:
            A(f"s_add_u32 s{sIt}, s{sIt}, 2\ns_cmp_ge_u32 s{sIt}, s{sN}\ns_cbranch_scc1 L_loopend")
        if u == 3:
            A(f"s_xor_b32 s{sM}, s{sM}, 0x4000\ns_add_u32 s{sIt}, s{sIt}, 2\ns_cmp_lt_u32 s{sIt}, s{sN}\ns_cbranch_scc1 L_loop")
    A("L_loopend:")
    A("s_waitcnt vmcnt(0) lgkmcnt(0)")
    A(f"s_cmp_lg_u32 s{sPH}, 0\ns_cbranch_scc1 L_xchg")
    A.st(4)
    def w2_setup():
        A(f"s_lshr_b32 s{sNT}, s{sX}, 1\ns_lshl_b32 s{sNT}, s{sNT}, 3\ns_lshr_b32 s68, s{sJ}, 2\ns_add_u32 s{sNT}, s{sNT}, s68")
        w_setup(A, pW2, 4096, 54)
        A(f"s_mov_b32 s{sM}, s{sLB}")
    A(f"s_mov_b32 s50, s{sNT}")
    w2_setup()
    for s in range(4, 8): dma_step(A, s*4096)
    A("L_xchg:")
    A(f"v_add_u32 v{t0}, s{sLB}, v{vA0}")
    for a in range(1, 4):
        for db in range(5):
            c = ACC0 + (a*5+db)*4
            A(f"ds_write_b128 v{t0}, v[{c}:{c+3}] offset:{((a-1)*5+db)*1024}")
    A.arrive(0, 4)
    for a in range(1, 4):
        A(f"s_sub_u32 s68, s3, {a}\ns_and_b32 s68, s68, 3\ns_lshl_b32 s68, s68, 15\nv_add_u32 v{4+a}, s68, v{vA0}")
    A(f"s_add_u32 s{sBAR}, s{sBAR}, 4")
    A.waitge(0, f"s{sBAR}", 4)
    for a in range(1, 4):
        for db in range(5):
            r = ACT0 + ((a-1)*5+db)*4
            A(f"ds_read_b128 v[{r}:{r+3}], v{4+a} offset:{((a-1)*5+db)*1024}")
    for a in range(1, 4):
        A(f"s_waitcnt lgkmcnt({(3-a)*5})")
        for db in range(5):
            r = ACT0 + ((a-1)*5+db)*4; c = ACC0 + db*4
            A(f"v_pk_add_f32 v[{c}:{c+1}], v[{c}:{c+1}], v[{r}:{r+1}]\nv_pk_add_f32 v[{c+2}:{c+3}], v[{c+2}:{c+3}], v[{r+2}:{r+3}]")
    b = 4
    A(f"v_lshlrev_b32 v{b}, 16, v{E}\nv_and_b32 v{b+1}, 0xffff0000, v{E}\nv_lshlrev_b32 v{b+2}, 16, v{E+1}\nv_and_b32 v{b+3}, 0xffff0000, v{E+1}")
    R = 36
    for db in range(5):
        c = ACC0 + db*4; t = R + db*4
        A(f"v_cvt_pk_bf16_f32 v{t}, v{c}, v{c+1}\nv_cvt_pk_bf16_f32 v{t+2}, v{c+2}, v{c+3}")
    for db in range(5):
        t = R + db*4
        A(f"v_and_b32 v{t+1}, 0xffff0000, v{t}\nv_lshlrev_b32 v{t}, 16, v{t}\nv_and_b32 v{t+3}, 0xffff0000, v{t+2}\nv_lshlrev_b32 v{t+2}, 16, v{t+2}")
    for db in range(5):
        t = R + db*4
        A(f"v_pk_add_f32 v[{t}:{t+1}], v[{t}:{t+1}], v[{b}:{b+1}]\nv_pk_add_f32 v[{t+2}:{t+3}], v[{t+2}:{t+3}], v[{b+2}:{b+3}]")
    for db in range(5):
        t = R + db*4
        A(f"v_cvt_pk_bf16_f32 v{t}, v{t}, v{t+1}\nv_cvt_pk_bf16_f32 v{t+2}, v{t+2}, v{t+3}")
    for db in range(5):
        t = R + db*4
        A(f"v_and_b32 v{t+1}, 0xffff0000, v{t}\nv_lshlrev_b32 v{t}, 16, v{t}\nv_and_b32 v{t+3}, 0xffff0000, v{t+2}\nv_lshlrev_b32 v{t+2}, 16, v{t+2}")
    A(f"s_cmp_lg_u32 s{sPH}, 0\ns_cbranch_scc1 L_final")
    k0 = math.sqrt(2/math.pi); k1 = 0.044715
    c0 = -2*k0*L2E; c1 = c0*k1
    A(f"s_mov_b32 s68, {f32bits(c1)}\ns_mov_b32 s69, s68\nv_mov_b32 v8, {f32bits(c0)}\nv_mov_b32 v9, v8")
    Z = 56
    for i in range(10): A(f"v_pk_mul_f32 v[{Z+2*i}:{Z+2*i+1}], v[{R+2*i}:{R+2*i+1}], v[{R+2*i}:{R+2*i+1}]")
    for i in range(10): A(f"v_pk_fma_f32 v[{Z+2*i}:{Z+2*i+1}], v[{Z+2*i}:{Z+2*i+1}], s[68:69], v[8:9]")
    for i in range(10): A(f"v_pk_mul_f32 v[{Z+2*i}:{Z+2*i+1}], v[{Z+2*i}:{Z+2*i+1}], v[{R+2*i}:{R+2*i+1}]")
    for i in range(20): A(f"v_exp_f32 v{Z+i}, v{Z+i}")
    for i in range(20): A(f"v_add_f32 v{Z+i}, 1.0, v{Z+i}")
    for i in range(20): A(f"v_rcp_f32 v{Z+i}, v{Z+i}")
    A(f"s_mul_i32 s68, s{sDT}, 5120\ns_add_u32 s68, s68, {GO}")
    A.srd(16, pWS, 54*40960, "s68")
    A("s_lshl_b32 s68, s50, 1\ns_lshr_b32 s69, s3, 1\ns_add_u32 s68, s68, s69\ns_mul_i32 s68, s68, 40960\ns_and_b32 s69, s3, 1\ns_lshl_b32 s69, s69, 9\ns_add_u32 s68, s68, s69\ns_add_u32 s69, s68, 4096")
    A("v_bfe_u32 v10, v2, 4, 1\nv_lshlrev_b32 v10, 10, v10\nv_lshrrev_b32 v11, 5, v2\nv_lshl_add_u32 v10, v11, 8, v10\nv_and_b32 v11, 15, v2\nv_lshl_add_u32 v10, v11, 4, v10")
    for i in range(10): A(f"v_pk_mul_f32 v[{Z+2*i}:{Z+2*i+1}], v[{Z+2*i}:{Z+2*i+1}], v[{R+2*i}:{R+2*i+1}]")
    P = 12
    for i in range(10): A(f"v_cvt_pk_bf16_f32 v{P+i}, v{Z+2*i}, v{Z+2*i+1}")
    for p in range(3): A(f"v_permlane16_swap_b32 v{P+4*p}, v{P+4*p+2}\nv_permlane16_swap_b32 v{P+4*p+1}, v{P+4*p+3}")
    A(f"buffer_store_dwordx4 v[{P}:{P+3}], v10, s[16:19], s68 offen sc1\nbuffer_store_dwordx4 v[{P+4}:{P+7}], v10, s[16:19], s68 offen offset:2048 sc1")
    A(f"s_mov_b32 exec_lo, 0xffff\ns_mov_b32 exec_hi, 0xffff\nbuffer_store_dwordx4 v[{P+8}:{P+11}], v10, s[16:19], s69 offen sc1\ns_mov_b64 exec, -1")
    A("s_waitcnt vmcnt(0)")
    A.gbar(4)
    A("s_cmp_lg_u32 s3, 0\ns_cbranch_scc1 L_noflag2")
    A(f"s_lshl_b32 s72, s{sDT}, 5\ns_add_u32 s72, s72, s50\ns_lshl_b32 s72, s72, 7\ns_add_u32 s72, s72, {F2}")
    A.setflag("s72", 4)
    A("L_noflag2:")
    A.st(5)
    for s in range(0, 4): dma_step(A, s*4096)
    A("L_pre2:")
    if touch2:
        A(f"s_and_b32 s68, s{sJ}, 3\ns_lshl_b32 s68, s68, 1\ns_mul_i32 s68, s68, s{sWstep}\ns_add_u32 s68, s68, s{sW}")
        A(f"v_lshrrev_b32 v36, 5, v2\nv_lshlrev_b32 v36, 19, v36\nv_and_b32 v37, 31, v2\nv_lshl_add_u32 v36, v37, 12, v36")
        A(f"s_cmp_lt_u32 s68, s{sWend}\ns_cselect_b32 s14, 7077888, 0")
        A("buffer_load_dword v231, v36, s[12:15], s68 offen\ns_mov_b32 s14, 7077888")
    A(f"s_mov_b32 s{sPH}, 1\ns_add_u32 s{sM}, s{sLB}, 0x4000")
    for a in range(4): A(f"v_or_b32 v{vT+a}, 0x4000, v{vT+a}")
    A(f"s_mul_i32 s68, s{sDT}, 5120\ns_add_u32 s68, s68, {GO}")
    A.srd(16, pWS, 54*40960, "s68")
    A(f"s_mul_i32 s{sA}, s3, 40960\ns_mov_b32 s{sAstep}, {4*40960}\ns_mov_b32 s{sAend}, {54*40960}\ns_mov_b32 s{sAsz}, {54*40960}\ns_mov_b32 s{sN}, 14")
    A(f"s_lshl_b32 s84, s{sNT}, 6\ns_lshl_b32 s68, s3, 4\ns_add_u32 s84, s84, s68")
    A.srd(28, pWS, SZ_X, AT); A.srd(32, pWS, 2048*8, GATE)
    A(f"v_lshrrev_b32 v{E+20}, 4, v2\nv_and_b32 v{E+21}, 15, v2")
    A(f"s_lshl_b32 s85, s84, 1\nv_lshl_add_u32 v{E}, v{E+20}, 3, s85")
    A(f"v_lshlrev_b32 v{E+22}, 5, v{E+20}\ns_lshl_b32 s68, s84, 3")
    A(f"global_load_dwordx2 v[{E}:{E+1}], v{E}, s[{pB2}:{pB2+1}]")
    A(f"buffer_load_dwordx4 v[{E+2}:{E+5}], v{E+22}, s[32:35], s68 offen sc1\nbuffer_load_dwordx4 v[{E+6}:{E+9}], v{E+22}, s[32:35], s68 offen offset:16 sc1")
    A(f"v_lshlrev_b32 v{E+23}, 12, v{E+21}\nv_lshl_add_u32 v{E+23}, v{E+20}, 3, v{E+23}")
    A("s_cmp_lg_u32 s3, 0\ns_cbranch_scc1 L_w2")
    A(f"v_min_u32 v36, 26, v2\nv_lshlrev_b32 v36, 7, v36\nv_lshlrev_b32 v37, 7, v2\nv_and_b32 v38, 15, v2\nv_lshlrev_b32 v38, 7, v38")
    A(f"s_lshl_b32 s50, s{sDT}, 12\ns_add_u32 s50, s50, {F2}\ns_mul_i32 s51, s{sDT}, {80*128}\ns_add_u32 s51, s51, {F3}\ns_add_u32 s81, s51, 8192")
    A.poll([(36, "s50"), (37, "s51"), (38, "s81")], [40, 41, 42])
    A.arrive(2, 36)
    A("s_branch L_w2d")
    A("L_w2:")
    A.waitge(2, 1, 36, sleep=1)
    A("L_w2d:")
    A.st(6)
    A(f"s_mul_i32 s68, s{sDT}, {80*4096}\ns_add_u32 s68, s68, s85")
    for db in range(5):
        A(f"buffer_load_dwordx2 v[{E+10+2*db}:{E+11+2*db}], v{E+23}, s[28:31], s68 offen sc1")
        if db < 4: A("s_add_u32 s68, s68, 65536")
    A("s_branch L_gemm")
    A("L_final:")
    A.srd(28, pOUT, SZ_X)
    A(f"s_add_u32 s85, s{sLB}, 0x4000")
    A(f"v_mul_u32_u24 v8, 704, v{E+20}\nv_lshl_add_u32 v8, v{E+21}, 1, v8\nv_add_u32 v8, s85, v8")
    Z = 56
    for db in range(5):
        a = E+10+2*db; z = Z + 4*db
        A(f"v_lshlrev_b32 v{z}, 16, v{a}\nv_and_b32 v{z+1}, 0xffff0000, v{a}\nv_lshlrev_b32 v{z+2}, 16, v{a+1}\nv_and_b32 v{z+3}, 0xffff0000, v{a+1}")
    for db in range(5):
        for r in range(4): A(f"v_mul_f32 v{R+4*db+r}, v{R+4*db+r}, v{E+3+2*r}\nv_mul_f32 v{Z+4*db+r}, v{Z+4*db+r}, v{E+2+2*r}")
    for i in range(20): A(f"v_cvt_pk_bf16_f32 v{R+2*i}, v{R+2*i}, v{R+2*i+1}")
    for i in range(20): A(f"v_and_b32 v{R+2*i+1}, 0xffff0000, v{R+2*i}\nv_lshlrev_b32 v{R+2*i}, 16, v{R+2*i}")
    for i in range(10): A(f"v_pk_add_f32 v[{R+2*i}:{R+2*i+1}], v[{R+2*i}:{R+2*i+1}], v[{Z+2*i}:{Z+2*i+1}]")
    for db in range(5):
        t = R + 4*db
        A(f"v_cvt_pk_bf16_f32 v{t}, v{t}, v{t+1}\nv_cvt_pk_bf16_f32 v{t+1}, v{t+2}, v{t+3}")
        A(f"ds_write_b16 v8, v{t} offset:{32*db}\nds_write_b16_d16_hi v8, v{t} offset:{32*db+176}")
        A(f"ds_write_b16 v8, v{t+1} offset:{32*db+352}\nds_write_b16_d16_hi v8, v{t+1} offset:{32*db+528}")
    A(f"s_mul_i32 s68, s84, 1280\ns_mul_i32 s69, s{sDT}, 160\ns_add_u32 s68, s68, s69")
    for i in range(3):
        c, row, col = 80+4*i, 81+4*i, 82+4*i
        A(f"v_add_u32 v{c}, {64*i}, v2\nv_mul_u32_u24 v{row}, 205, v{c}\nv_lshrrev_b32 v{row}, 11, v{row}")
        A(f"v_mul_u32_u24 v{col}, 10, v{row}\nv_sub_u32 v{col}, v{c}, v{col}\nv_lshlrev_b32 v{col}, 4, v{col}")
        A(f"v_mul_u32_u24 v{c}, 176, v{row}\nv_add3_u32 v{c}, v{c}, v{col}, s85")
        A(f"v_mul_u32_u24 v{row}, 1280, v{row}\nv_add_u32 v{row}, v{row}, v{col}")
    A("s_waitcnt lgkmcnt(0)")
    A("ds_read_b128 v[96:99], v80\nds_read_b128 v[100:103], v84\nds_read_b128 v[104:107], v88")
    A("s_waitcnt lgkmcnt(2)\nbuffer_store_dwordx4 v[96:99], v81, s[28:31], s68 offen")
    A("s_waitcnt lgkmcnt(1)\nbuffer_store_dwordx4 v[100:103], v85, s[28:31], s68 offen")
    A("s_waitcnt lgkmcnt(0)\ns_mov_b32 exec_hi, 0\nbuffer_store_dwordx4 v[104:107], v89, s[28:31], s68 offen")
    A.st_end()
    A("s_endpgm")
    A("L_freecu:")
    w2_setup()
    A(f"s_lshr_b32 s68, s{sX}, 1\ns_cmp_eq_u32 s68, 3\ns_cselect_b32 s68, 24, 28\ns_sub_u32 s68, s{sJ}, s68")
    A(f"s_cmp_ge_u32 s68, 4\ns_cbranch_scc1 L_waitf1")
    A(f"s_lshl_b32 s22, s68, 2\ns_add_u32 s22, s22, s3\ns_lshl_b32 s68, s{sX}, 4\ns_add_u32 s22, s22, s68\ns_add_u32 s22, s22, 512")
    A(f"s_mov_b32 s23, s{sLB}\ns_setprio 0\ns_mov_b32 s0, 1\ns_branch L_chan")
    A("L_chan_ret:")
    if prio: A("s_setprio 1")
    for s in (4, 5, 6, 7, 0, 1, 2, 3): dma_step(A, s*4096)
    A("s_branch L_pre2")
    A("L_cwave:")
    A(f"s_lshl_b32 s22, s{sX}, 6\ns_lshl_b32 s68, s{sJ}, 1\ns_add_u32 s22, s22, s68\ns_sub_u32 s68, s3, 4\ns_add_u32 s22, s22, s68")
    A(f"s_mul_i32 s23, s68, {CSZ}\ns_add_u32 s23, s23, {CREG}")
    A("s_waitcnt lgkmcnt(0)")
    A.srd(24, pWS, FLSZ, FL)
    if codetouch:
        A("s_getpc_b64 s[68:69]\nL_pc:\ns_sub_u32 s68, s68, L_pc-" + KN + "\ns_subb_u32 s69, s69, 0\nv_lshlrev_b32 v22, 7, v2\ns_sub_u32 s70, s3, 4\ns_lshl_b32 s70, s70, 13\nv_add_u32 v22, s70, v22")
        A("global_load_dword v231, v22, s[68:69]")
        A("v_add_u32 v22, 0x4000, v22\nv_min_u32 v22, L_codeend-" + KN + "-4, v22\nglobal_load_dword v231, v22, s[68:69]")
    A("s_barrier")
    A("s_mov_b32 s0, 0")
    A("L_chan:")
    A("s_lshl_b32 s68, s22, 8\nv_lshl_add_u32 v3, v2, 2, s68")
    for i, p in enumerate((pLA, pAI, pCR, pCI)): A(f"global_load_dword v{4+i}, v3, s[{p}:{p+1}]")
    A(f"s_lshr_b32 s68, s22, 1\ns_lshl_b32 s68, s68, 2\ns_load_dword s20, s[{pLDT}:{pLDT+1}], s68\ns_load_dword s21, s[{pDS}:{pDS+1}], s68")
    sL, sLlo, sLn2, sI, sIlo = 28, 29, 30, 31, 32
    A(f"s_mov_b32 s{sL}, {f32bits(L2E_HI)}\ns_mov_b32 s{sLlo}, {f32bits(L2E_LO)}\ns_mov_b32 s{sLn2}, {f32bits(math.log(2))}\ns_mov_b32 s{sI}, {f32bits(I2P_HI)}\ns_mov_b32 s{sIlo}, {f32bits(I2P_LO)}")
    A("s_mov_b32 s34, 0x46800000\ns_mov_b32 s35, 0x46800000")
    A("v_lshl_add_u32 v8, v2, 2, s23")
    A("v_and_b32 v9, 15, v2\nv_lshrrev_b32 v10, 4, v2")
    A("v_mul_u32_u24 v11, 272, v9\nv_lshl_add_u32 v11, v10, 4, v11\nv_add_u32 v11, s23, v11")
    ACC = 24
    for i in range(12): A(f"v_mov_b32 v{ACC+i}, 0")
    A("s_and_b32 s68, s22, 1\ns_lshl_b32 s68, s68, 4")
    A("s_waitcnt lgkmcnt(0)")
    A("s_lshr_b32 s20, s20, s68\ns_lshl_b32 s20, s20, 16\ns_lshr_b32 s21, s21, s68\ns_lshl_b32 s21, s21, 16")
    A("v_mov_b32 v12, s20")
    A.exp_precise(12, 12, 13, 14, sL, sLlo, sLn2)
    A.bfr(12, 12)
    A("s_waitcnt vmcnt(0)")
    A.st(1)
    A("v_lshlrev_b32 v13, 16, v6\nv_lshlrev_b32 v14, 16, v7\nv_and_b32 v15, 0x7fff0000, v6\nv_and_b32 v16, 0x7fff0000, v7")
    A("v_max3_f32 v13, |v13|, |v14|, v15\nv_max_f32 v13, v13, v16")
    for ctl in ("quad_perm:[1,0,3,2]", "quad_perm:[2,3,0,1]", "row_half_mirror", "row_mirror"):
        A(f"v_max_f32_dpp v13, v13, v13 {ctl} row_mask:0xf bank_mask:0xf")
    for i in range(4): A(f"v_readlane_b32 s{82+i}, v13, {16*i}")
    A("s_max_u32 s82, s82, s83\ns_max_u32 s84, s84, s85\ns_max_u32 s82, s82, s84\ns_lshr_b32 s82, s82, 23\ns_max_u32 s82, s82, 25\ns_min_u32 s82, s82, 254")
    A("s_sub_u32 s83, 265, s82\ns_lshl_b32 s83, s83, 23")
    A("s_sub_u32 s84, s82, 24\ns_lshl_b32 s84, s84, 23")
    A("s_mov_b32 s85, 16")
    E1, E8, H, F = 40, 42, 44, 46
    rowof = {}
    for e in range(8): rowof[(0,e)] = e; rowof[(1,e)] = 8+e
    for n,(i,e) in enumerate([(2,0),(2,4),(3,0),(3,4),(2,2),(2,6),(3,2),(3,6),(4,0),(4,4),(5,0),(5,4),(6,0),(6,4),(7,0),(7,4)]): rowof[(i,e)] = 16+n
    for i in range(8,17): rowof[(i,0)] = 32+i-8
    def cmul(d, x, y):
        return [f"v_pk_mul_f32 v[{d}:{d+1}], v[{x}:{x+1}], v[{y}:{y+1}] op_sel:[0,0] op_sel_hi:[0,1]",
                f"v_pk_fma_f32 v[{d}:{d+1}], v[{x}:{x+1}], v[{y}:{y+1}], v[{d}:{d+1}] op_sel:[1,1,0] op_sel_hi:[1,0,1] neg_lo:[1,0,0]"]
    A("L_kpass:")
    for d, s in ((13,4),(14,5),(F,6),(F+1,7)): A(f"v_lshlrev_b32 v{d}, s85, v{s}\nv_and_b32 v{d}, 0xffff0000, v{d}")
    A.exp_precise(13, 13, 15, 16, sL, sLlo, sLn2)
    A(f"v_mul_f32 v14, v14, v12")
    A.bfr(13, 13)
    A(f"v_mul_f32 v15, s{sI}, v14\nv_mul_f32 v13, v13, v12\nv_fma_f32 v16, v14, s{sI}, -v15\nv_mul_f32 v13, s{sL}, v13\nv_fma_f32 v16, v14, s{sIlo}, v16")
    A(f"v_mul_f32 v{F}, s83, v{F}\nv_mul_f32 v{F+1}, s83, v{F+1}")
    gens = ((1,E1),(8,E8),(128,H))
    for n,(q,Eq) in enumerate(gens): A(f"v_mul_f32 v{17+2*n}, {f32bits(-q)}, v13\nv_mul_f32 v{18+2*n}, {f32bits(q)}, v15")
    for n,(q,Eq) in enumerate(gens): A(f"v_exp_f32 v{17+2*n}, v{17+2*n}\nv_fract_f32 v{18+2*n}, v{18+2*n}\nv_fmamk_f32 v{18+2*n}, v16, {f32bits(q)}, v{18+2*n}")
    for n,(q,Eq) in enumerate(gens): A(f"v_cos_f32 v{Eq}, v{18+2*n}\nv_sin_f32 v{Eq+1}, v{18+2*n}")
    for n,(q,Eq) in enumerate(gens): A(f"v_mul_f32 v{Eq}, v{Eq}, v{17+2*n}\nv_mul_f32 v{Eq+1}, v{Eq+1}, v{17+2*n}")
    def emit(src, row, tmp, neg):
        return [f"v_cvt_pk_f16_f32 v{tmp}, v{src}, {'-' if neg else ''}v{src+1}", f"ds_write_b32 v8, v{tmp} offset:{row*272}"]
    def chain(e, n, pp, tmps):
        out = []; prev = F+2*e
        for i in range(1, n+1):
            d = pp[i % 2]
            out += cmul(d, prev, H) + emit(d, rowof[(i,e)], tmps[i%2], True); prev = d
        return out
    T1 = ["v_mov_b32_e64 v74, s34", f"v_pk_mul_f32 v[62:63], v[{E8}:{E8+1}], s[34:35]", "v_cvt_pk_f16_f32 v74, v74, 0", f"ds_write_b32 v8, v74 offset:{41*272}"] + emit(62, 42, 75, False)
    prev = 62
    for j in range(2, 16):
        d = 62 + 2*((j+1) % 2)
        T1 += cmul(d, prev, E8) + emit(d, 41+j, 74+(j%2), False); prev = d
    T1 += chain(6, 3, (62,64), (74,75))
    T3 = chain(0, 16, (66,68), (76,77)) + chain(2, 3, (66,68), (76,77))
    T2 = emit(F, 0, 78, True)
    for e in range(1, 8): T2 += cmul(F+2*e, F+2*e-2, E1) + emit(F+2*e, e, 78+(e%2), True)
    for n,e in enumerate((1,3,5,7)):
        d = 70+2*(n%2)
        T2 += cmul(d, F+2*e, H) + emit(d, rowof[(1,e)], 78+(n%2), True)
    T2 += chain(4, 7, (70,72), (78,79))
    A(".p2align 3")
    for i in range(max(len(T1),len(T2),len(T3))):
        for T in (T2, T3, T1):
            if i < len(T): A(T[i])
    A("s_waitcnt lgkmcnt(0)")
    for ks in range(4): A(f"ds_read_b128 v[{80+4*ks}:{83+4*ks}], v11 offset:{41*272+ks*64}")
    for T in range(3):
        for ks in range(4): A(f"ds_read_b128 v[{96+16*T+4*ks}:{99+16*T+4*ks}], v11 offset:{T*16*272+ks*64}")
    for T in range(3):
        A(f"s_waitcnt lgkmcnt({8-4*T})")
        for ks in range(4):
            A(f"v_mfma_f32_16x16x32_f16 v[{ACC+4*T}:{ACC+4*T+3}], v[{96+16*T+4*ks}:{99+16*T+4*ks}], v[{80+4*ks}:{83+4*ks}], v[{ACC+4*T}:{ACC+4*T+3}]")
    A("s_sub_u32 s85, s85, 16\ns_cbranch_scc0 L_kpass")
    A("v_mul_f32 v12, s84, v12")
    A("v_lshlrev_b32 v13, 5, v9\nv_add_u32 v13, s23, v13")
    A("v_lshrrev_b32 v14, 1, v10\nv_lshlrev_b32 v14, 9, v14\nv_and_b32 v15, 1, v10\nv_lshl_add_u32 v14, v15, 4, v14\nv_add_u32 v14, v14, v13")
    A("v_max_u32 v15, 1, v10\nv_lshlrev_b32 v15, 10, v15\nv_cmp_eq_u32 vcc, 1, v10\nv_cndmask_b32_e64 v16, 0, 8, vcc")
    A("v_add3_u32 v15, v15, v16, v13\nv_lshl_add_u32 v16, v10, 11, v13")
    for i in range(12): A(f"v_mul_f32 v{ACC+i}, v{ACC+i}, v12")
    A(f"ds_write_b128 v14, v[{ACC}:{ACC+3}]")
    A(f"ds_write2_b32 v15, v{ACC+4}, v{ACC+5} offset0:0 offset1:4\nds_write2_b32 v15, v{ACC+6}, v{ACC+7} offset0:128 offset1:132")
    for r in range(4): A(f"ds_write_b32 v16, v{ACC+8+r} offset:{4096+512*r}")
    A("v_lshl_add_u32 v13, v2, 5, s23")
    A("v_sub_u32 v14, 63, v2\nv_lshl_add_u32 v14, v14, 4, s23")
    A("ds_read_b128 v[40:43], v13\nds_read_b128 v[44:47], v13 offset:16\nds_read_b32 v48, v13 offset:32")
    A("ds_read_b32 v49, v13 offset:2048\nds_read_b32 v50, v13 offset:2064\nds_read_b32 v51, v13 offset:2080")
    A("ds_read_b32 v52, v13 offset:4096\nds_read_b32 v53, v13 offset:4128\nds_read_b32 v54, v13 offset:6144\nds_read_b32 v55, v13 offset:6176")
    A("v_cmp_le_u32 vcc, 32, v2\nv_and_b32 v15, 1, v2\nv_cmp_eq_u32 s[82:83], 1, v15")
    A("v_mov_b32 v4, 0\nv_mov_b32 v5, 0\nv_lshl_add_u32 v6, v2, 3, s23")
    A("s_waitcnt lgkmcnt(0)")
    A(f"ds_write_b64 v6, v[4:5] offset:{KRO+4096}")
    A("s_mov_b64 exec, 0xf\nds_write_b64 v6, v[4:5]\ns_mov_b64 exec, -1")
    A("v_cndmask_b32 v41, v41, v40, vcc\nv_cndmask_b32 v43, v43, v44, vcc\nv_cndmask_b32 v45, v45, v44, vcc\nv_cndmask_b32 v47, v47, v48, vcc")
    A("v_cvt_pk_bf16_f32 v56, v47, v46\nv_cvt_pk_bf16_f32 v57, v45, v44\nv_cvt_pk_bf16_f32 v58, v43, v42\nv_cvt_pk_bf16_f32 v59, v41, v40")
    A(f"ds_write_b128 v14, v[56:59] offset:{KRO+3072}")
    A("v_cvt_pk_bf16_f32 v60, v51, v51\nv_cvt_pk_bf16_f32 v61, v50, v50\nv_cvt_pk_bf16_f32 v62, v50, v49\nv_cvt_pk_bf16_f32 v63, v49, v49")
    A(f"ds_write_b128 v14, v[60:63] offset:{KRO+2048}")
    for n,(c,nx) in enumerate(((52,53),(54,55))):
        o = 64+4*n
        A(f"v_cndmask_b32 v40, v{c}, v{nx}, s[82:83]")
        A(f"v_cvt_pk_bf16_f32 v{o}, v{nx}, v{nx}\nv_cvt_pk_bf16_f32 v{o+2}, v{c}, v{c}\nv_cvt_pk_bf16_f32 v{o+1}, v{nx}, v40\nv_mov_b32 v{o+3}, v{o+2}")
        A(f"ds_write_b128 v14, v[{o}:{o+3}] offset:{KRO+1024*(1-n)}")
    A.st(2)
    A.srd(28, pWS, 0x500000, HU)
    A("v_lshrrev_b32 v3, 2, v2\ns_mov_b32 s68, 81920\nv_mul_lo_u32 v3, v3, s68\nv_and_b32 v7, 3, v2\nv_lshl_add_u32 v3, v7, 8, v3")
    A("s_lshr_b32 s82, s22, 4\ns_add_u32 s82, s82, 40\ns_lshl_b32 s82, s82, 10\ns_and_b32 s83, s22, 15\ns_lshl_b32 s83, s83, 4\ns_add_u32 s82, s82, s83")
    A("v_lshl_add_u32 v7, v2, 4, s23")
    A("v_and_b32 v10, 1, v9\nv_add_u32 v11, v9, v10\nv_lshrrev_b32 v19, 4, v2\nv_lshl_add_u32 v11, v19, 3, v11\nv_lshlrev_b32 v11, 1, v11")
    A(f"v_xor_b32 v10, 1, v10\nv_mul_u32_u24 v10, {U1O}, v10\nv_add3_u32 v12, v11, v10, s23")
    for m in range(1, 4): A(f"v_add_u32 v{12+m}, {1024*m}, v12")
    A(f"v_lshlrev_b32 v16, 4, v19\nv_lshlrev_b32 v17, 5, v9\nv_sub_u32 v16, v16, v17\ns_add_u32 s83, s23, {KRO+480}\nv_add_u32 v16, s83, v16")
    A("v_lshl_add_u32 v18, v19, 3, v17\nv_add_u32 v18, s23, v18")
    A("v_and_b32 v20, 1, v19\nv_lshl_add_u32 v17, v20, 9, v17\nv_lshrrev_b32 v20, 1, v19\nv_lshl_add_u32 v17, v20, 4, v17")
    waitF1()
    A.st(3)
    for i in range(4):
        A(f"s_add_u32 m0, s23, {32+1024*i}\ns_nop 0\nbuffer_load_dwordx4 v3, s[28:31], s82 offen sc1 lds")
        if i < 3: A(f"s_add_u32 s82, s82, {16*81920}")
    CA, CB, CACC = 24, 56, 152
    for i in range(32): A(f"v_mov_b32 v{CACC+i}, 0")
    A.srd(28, pWS, SZ_X, AT)
    A("s_mov_b32 s20, s21\ns_lshl_b32 s82, s22, 12\ns_mov_b32 s85, 0")
    A("s_waitcnt vmcnt(0)")
    for i in range(4): A(f"ds_read_b128 v[{24+8*i}:{27+8*i}], v7 offset:{1024*i}\nds_read_b32 v{28+8*i}, v7 offset:{1024*i+16}")
    A("ds_read_b128 v[56:59], v7 offset:4096\nds_read_b32 v60, v7 offset:4112")
    for i in range(5):
        A(f"s_waitcnt lgkmcnt({8-2*i})")
        r = 24+8*i; o = 64+4*i
        for q in range(4): A(f"v_alignbit_b32 v{o+q}, v{r+q+1}, v{r+q}, 16")
        if i == 4: A("s_mov_b64 exec, 3")
        A(f"ds_write_b128 v7, v[{o}:{o+3}] offset:{U1O+1024*i}")
    A("s_mov_b64 exec, -1")
    A.st(4)
    def loads(s, rel):
        out = []
        for x in range(8):
            a = CA + 64*s + 4*x; b = CB + 64*s + 4*x
            o = 128*(x & 1) + 16*rel
            out.append(f"ds_read_b128 v[{b}:{b+3}], v16 offset:{512*(7-x)+64*rel}")
            out.append(f"ds_read2_b32 v[{a}:{a+1}], v{12+(x>>1)} offset0:{o} offset1:{o+1}")
            out.append(f"ds_read2_b32 v[{a+2}:{a+3}], v{12+(x>>1)} offset0:{o+2} offset1:{o+3}")
        return out
    for l in loads(0, 0): A(l)
    A(".p2align 3\nL_conv:")
    for s in range(2):
        A("s_waitcnt lgkmcnt(0)\ns_nop 0")
        nxt = loads(1-s, s+1)
        cnt = 0
        for kap in range(8):
            for mt in range(kap, 8):
                a = CA + 64*s + 4*kap; b = CB + 64*s + 4*(mt-kap); c = CACC + 4*mt
                A(f"v_mfma_f32_16x16x32_bf16 v[{c}:{c+3}], v[{a}:{a+3}], v[{b}:{b+3}], v[{c}:{c+3}]")
                if cnt < len(nxt): A(nxt[cnt])
                cnt += 1
    for r in (12, 13, 14, 15, 16): A(f"v_add_u32 v{r}, 128, v{r}")
    A("s_add_u32 s85, s85, 1\ns_cmp_lt_u32 s85, 4\ns_cbranch_scc1 L_conv")
    A("s_waitcnt lgkmcnt(0)")
    A.st(5)
    for mt in range(8): A(f"ds_read_b64 v[{24+4*mt}:{25+4*mt}], v18 offset:{32+512*mt}")
    Y = 56
    for mt in range(8): A(f"v_cvt_pk_bf16_f32 v{Y+4*mt}, v{CACC+4*mt}, v{CACC+4*mt+1}\nv_cvt_pk_bf16_f32 v{Y+4*mt+2}, v{CACC+4*mt+2}, v{CACC+4*mt+3}")
    for i in range(16): A(f"v_and_b32 v{Y+2*i+1}, 0xffff0000, v{Y+2*i}\nv_lshlrev_b32 v{Y+2*i}, 16, v{Y+2*i}")
    A("s_waitcnt lgkmcnt(0)")
    for mt in range(8):
        t = 24+4*mt
        A(f"v_lshlrev_b32 v{t+2}, 16, v{t+1}\nv_and_b32 v{t+3}, 0xffff0000, v{t+1}\nv_and_b32 v{t+1}, 0xffff0000, v{t}\nv_lshlrev_b32 v{t}, 16, v{t}")
    for i in range(16): A(f"v_pk_mul_f32 v[{24+2*i}:{25+2*i}], v[{24+2*i}:{25+2*i}], s[20:21]")
    for i in range(16): A(f"v_cvt_pk_bf16_f32 v{24+2*i}, v{24+2*i}, v{25+2*i}")
    for i in range(16): A(f"v_and_b32 v{25+2*i}, 0xffff0000, v{24+2*i}\nv_lshlrev_b32 v{24+2*i}, 16, v{24+2*i}")
    for i in range(16): A(f"v_pk_add_f32 v[{24+2*i}:{25+2*i}], v[{24+2*i}:{25+2*i}], v[{Y+2*i}:{Y+2*i+1}]")
    for i in range(16): A(f"v_cvt_pk_bf16_f32 v{88+i}, v{24+2*i}, v{25+2*i}")
    for p in range(4): A(f"v_permlane16_swap_b32 v{88+4*p}, v{90+4*p}\nv_permlane16_swap_b32 v{89+4*p}, v{91+4*p}")
    for p in range(4): A(f"buffer_store_dwordx4 v[{88+4*p}:{91+4*p}], v17, s[28:31], s82 offen offset:{1024*p} sc1")
    A(f"s_lshl_b32 s82, s22, 7\ns_add_u32 s82, s82, {F3}\ns_waitcnt vmcnt(0)")
    A.setflag("s82", 4)
    A("s_cmp_eq_u32 s0, 1\ns_cbranch_scc1 L_chan_ret")
    A.st_end()
    A("L_end:\ns_endpgm\nL_codeend:")
    ref = open(f"cdna_kernels/{NAME}.s.ref").read().split("\n")
    head = [l for l in ref if l.startswith(";") and "@launch" not in l]
    out = head + [f"; @launch grid=(256,1,1) block=(384,1,1) lds={LDS_TOTAL}", '.amdgcn_target "amdgcn-amd-amdhsa--gfx950"\n.text']
    out += fix_hazards(A.L)
    out += ['.section .rodata,"a"', kdesc(KN, 232, 102)]
    return "\n".join(out) + "\n"

if __name__ == "__main__":
    path = sys.argv[1] if len(sys.argv) > 1 else f"cdna_kernels/{NAME}.s"
    kw = eval("dict(%s)" % sys.argv[2]) if len(sys.argv) > 2 else {}
    open(path, "w").write(build(**kw))
```

```python
import math, struct, sys
from asmlib import *
import numpy as np

NAME = "gated_mix__ssm_conv_s4d__mixer_token_mlp__prompt"
KN = NAME + "_kernel"
HU, GO, AT, GATE, STA, FL = 0, 0x500000, 0x780000, 0xA00000, 0xB00000, 0xC00000
F1, F2, F3, FLSZ = 0x1000, 0x10000, 0x20000, 0x40000
SZ_X = 2048*640*2
L2E = 1.4426950408889634
L2E_HI = float(np.float32(L2E)); L2E_LO = L2E - L2E_HI
I2P = 1/(2*math.pi)
I2P_HI = float(np.float32(I2P)); I2P_LO = I2P - I2P_HI
pU, pLA, pAI, pCR, pCI, pLDT, pDS = 36, 38, 40, 42, 44, 46, 48
pW1, pB1, pW2, pB2, pGW, pOUT, pDBG, pWS = 52, 54, 56, 58, 60, 62, 64, 66
sTAG, sX, sJ, sDT, sNT = 6, 8, 9, 10, 11
sLB = 7
sPH = 4
sBAR = 5
CREG = 131072; CSZ = 57*272
SYNC = CREG + 2*CSZ + 96
LDS_TOTAL = 163840
STG = 24576
U1O, KRO = 4160, 8320
WF0, ACT0, ACC0 = 4, 36, 116
vW0, vW1, vA0, vA1, vT = 196, 197, 198, 199, 200
t0, t1 = 204, 205
E = 206
vSY = 230
SPIN = 1 << 18

class K:
    def __init__(self, stamp): self.L = []; self.stamp = stamp; self.nl = 0
    def __call__(self, s): self.L.append(s)
    def lab(self, p): self.nl += 1; return f"L{p}{self.nl}"
    def srd(self, d, base, size, off=None):
        if off is None:
            self(f"s_mov_b32 s{d}, s{base}\ns_and_b32 s{d+1}, s{base+1}, 0xffff")
        else:
            self(f"s_add_u32 s{d}, s{base}, {off}\ns_addc_u32 s{d+1}, s{base+1}, 0\ns_and_b32 s{d+1}, s{d+1}, 0xffff")
        self(f"s_mov_b32 s{d+2}, {size}\ns_mov_b32 s{d+3}, 0x20000")
    def bfr(self, dst, src):
        self(f"v_cvt_pk_bf16_f32 v{dst}, v{src}, v{src}\nv_and_b32 v{dst}, 0xffff0000, v{dst}")
    def exp_precise(self, dst, x, t, r, sL, sLlo, sLn2):
        self(f"v_mul_f32 v{t}, s{sL}, v{x}\nv_fma_f32 v{r}, v{x}, s{sL}, -v{t}\nv_fma_f32 v{r}, v{x}, s{sLlo}, v{r}")
        self(f"v_exp_f32 v{t}, v{t}\nv_mul_f32 v{r}, s{sLn2}, v{r}\nv_fma_f32 v{dst}, v{t}, v{r}, v{t}")
    def st(self, i):
        if self.stamp: self(f"{'s_memtime' if self.stamp == 2 else 's_memrealtime'} s[{86+2*i}:{87+2*i}]")
    def S(self, name):
        if self.stamp:
            for i, n in enumerate(self.names):
                if name in n.split('/'): self.st(1 + i)
    def st_end(self):
        if not self.stamp: return
        A = self
        A("s_waitcnt vmcnt(0)"); A.st(7); A("s_waitcnt lgkmcnt(0)")
        A(f"s_lshl_b32 s68, s2, 3\ns_add_u32 s68, s68, s3\ns_lshl_b32 s68, s68, 5\ns_add_u32 s68, s68, {STA}")
        A("s_mov_b64 exec, 1")
        for i in range(8): A(f"v_mov_b32 v{4+i}, s{86+2*i}")
        A(f"v_mov_b32 v3, s68\nglobal_store_dwordx4 v3, v[4:7], s[{pWS}:{pWS+1}]\nglobal_store_dwordx4 v3, v[8:11], s[{pWS}:{pWS+1}] offset:16")
    def arrive(self, word, tmp):
        self(f"s_mov_b64 exec, 1\nv_mov_b32 v{tmp}, 1\nds_add_u32 v{vSY}, v{tmp} offset:{4*word}\ns_mov_b64 exec, -1")
    def waitge(self, word, target, tmp, sleep=0):
        l = self.lab("w"); e = self.lab("e")
        self(f"s_mov_b32 s69, 0\n{l}:\nds_read_b32 v{tmp}, v{vSY} offset:{4*word}\ns_add_u32 s69, s69, 1\ns_waitcnt lgkmcnt(0)\nv_readfirstlane_b32 s68, v{tmp}")
        self(f"s_cmp_ge_u32 s68, {target}\ns_cbranch_scc1 {e}")
        if sleep: self(f"s_sleep {sleep}")
        self(f"s_cmp_lt_u32 s69, {SPIN}\ns_cbranch_scc1 {l}\n{e}:")
    def gbar(self, tmp):
        self(f"s_add_u32 s{sBAR}, s{sBAR}, 4")
        self.arrive(0, tmp); self.waitge(0, f"s{sBAR}", tmp)
    def poll(self, loads, regs_, sleep=0):
        l = self.lab("p"); e = self.lab("q")
        self(f"s_mov_b32 s69, 0\n{l}:")
        for (va, so), r in zip(loads, regs_): self(f"buffer_load_dword v{r}, v{va}, s[24:27], {so} offen sc1")
        self("s_add_u32 s69, s69, 1\ns_waitcnt vmcnt(0)")
        for r in regs_: self(f"v_xor_b32 v{r}, s{sTAG}, v{r}")
        for r in regs_[1:]: self(f"v_or_b32 v{regs_[0]}, v{regs_[0]}, v{r}")
        self(f"v_cmp_ne_u32 vcc, 0, v{regs_[0]}\ns_cbranch_vccz {e}\ns_sleep {sleep}\ns_cmp_lt_u32 s69, {SPIN>>4}\ns_cbranch_scc1 {l}\n{e}:")
    def setflag(self, soff, tmp):
        self(f"s_mov_b64 exec, 1\nv_mov_b32 v{tmp}, s{sTAG}\nv_mov_b32 v{tmp+1}, 0\nbuffer_store_dword v{tmp}, v{tmp+1}, s[24:27], {soff} offen sc1\ns_mov_b64 exec, -1")

sA, sAstep, sAend, sAsz = 70, 71, 72, 73
sW, sWstep, sWend, sW8 = 74, 75, 76, 77
sM, sIt, sN = 78, 79, 80
def dma_step(A, slot_imm=None):
    for i in range(4):
        A(f"s_add_u32 m0, s{sM}, {(slot_imm or 0) + i*1024}")
        if i == 0: A("s_nop 0")
        elif i == 1: A(f"s_add_u32 s81, s{sW}, s{sW8}")
        else: A(f"s_add_u32 s81, s81, s{sW8}")
        A(f"buffer_load_dwordx4 v{vW1 if i%2 else vW0}, s[12:15], s{81 if i else sW} offen lds")
    A(f"s_add_u32 s{sW}, s{sW}, s{sWstep}")
def w_setup(A, ptr, stride, ktot, loader=False):
    A.srd(12, ptr, 7077888)
    A(f"v_lshrrev_b32 v{t0}, 3, v2\nv_mul_u32_u24 v{vW0}, {stride}, v{t0}\nv_and_b32 v{t1}, 7, v2")
    A(f"v_and_b32 v{t0}, 2, v{t0}\nv_xor_b32 v{t1}, v{t1}, v{t0}")
    A(f"v_lshl_add_u32 v{vW0}, v{t1}, 4, v{vW0}\nv_xor_b32 v{vW1}, 64, v{vW0}")
    if loader: A(f"s_lshl_b32 s{sW}, s{sNT}, 7")
    else: A(f"s_add_u32 s{sW}, s3, 32\ns_mul_i32 s{sW}, s{sW}, {32*stride}\ns_lshl_b32 s81, s{sNT}, 7\ns_add_u32 s{sW}, s{sW}, s81")
    A(f"s_mov_b32 s{sWstep}, {128*stride}\ns_mov_b32 s{sWend}, {ktot*32*stride}\ns_mov_b32 s{sW8}, {8*stride}")

def build(stamp=False, touch1=True, touch2=True, codetouch=True, prio=True, npre=4, st2=False, noconv=False, actmod='sc1', acttouch=True, w2l2=False, fastr=True, lateack=False, w2depth=8, t2early=False, dbg='', names='x st seen1 loop1 flag2 seen2'):
    A = K(stamp); A.names = names.split()
    A(f".globl {KN}\n.p2align 8\n.type {KN},@function\n{KN}:")
    A("s_cmp_ge_u32 s2, 256\ns_cbranch_scc1 L_end")
    A.st(0)
    A("s_load_dwordx16 s[36:51], s[0:1], 0\ns_load_dwordx16 s[52:67], s[0:1], 64")
    A("v_lshrrev_b32 v1, 6, v0\nv_and_b32 v2, 63, v0")
    A(f"v_mov_b32 v{vSY}, {SYNC}\nv_mov_b32 v4, 0\nv_mov_b32 v5, 0")
    A("v_readfirstlane_b32 s3, v1")
    for i in range(4): A(f"ds_write_b64 v{vSY}, v[4:5] offset:{8*i}")
    A(f"s_and_b32 s{sX}, s2, 7\ns_lshr_b32 s{sJ}, s2, 3\ns_mov_b32 s{sBAR}, 0")
    A(f"s_and_b32 s{sDT}, s{sX}, 1\ns_lshl_b32 s{sDT}, s{sDT}, 2\ns_and_b32 s68, s{sJ}, 3\ns_add_u32 s{sDT}, s{sDT}, s68")
    A(f"s_lshr_b32 s82, s{sX}, 1\ns_cmp_eq_u32 s82, 3\ns_cselect_b32 s83, 24, 28")
    A(f"s_cmp_lt_u32 s{sJ}, s83\ns_cselect_b32 s{sPH}, 0, 1")
    A(f"s_mul_i32 s{sNT}, s82, 7\ns_lshr_b32 s68, s{sJ}, 2\ns_add_u32 s{sNT}, s{sNT}, s68")
    A("s_cmp_eq_u32 s3, 6\ns_cbranch_scc1 L_lwave")
    A("s_cmp_ge_u32 s3, 4\ns_cbranch_scc1 L_cwave")
    if prio: A("s_setprio 1")
    A(f"s_lshl_b32 s{sLB}, s3, 15")
    A(f"s_lshl_b32 s84, s{sX}, 5\ns_add_u32 s84, s84, s{sJ}")
    A("s_lshl_b32 s85, s84, 3\ns_lshl_b32 s68, s3, 1\ns_add_u32 s85, s85, s68")
    A("s_mul_i32 s68, s85, 1280")
    A("v_lshlrev_b32 v14, 4, v2\nv_lshlrev_b32 v15, 2, v2\nv_add_u32 v15, 1024, v15")
    A("s_waitcnt lgkmcnt(0)")
    A.srd(28, pU, SZ_X)
    A("buffer_load_dwordx4 v[4:7], v14, s[28:31], s68 offen\nbuffer_load_dword v12, v15, s[28:31], s68 offen")
    A("buffer_load_dwordx4 v[8:11], v14, s[28:31], s68 offen offset:1280\nbuffer_load_dword v13, v15, s[28:31], s68 offen offset:1280")
    A(f"global_load_dwordx4 v[16:19], v14, s[{pGW}:{pGW+1}]\nglobal_load_dword v20, v15, s[{pGW}:{pGW+1}]")
    A.srd(24, pWS, FLSZ, FL)
    A("v_mov_b32 v21, 0\nbuffer_load_dword v21, v21, s[24:27], 0 offen sc1")
    A("s_barrier")
    w_setup(A, pW1, 3456, 64)
    A(f"s_mov_b32 s{sM}, s{sLB}")
    A("s_waitcnt vmcnt(0)")
    A.S("x")
    X = (24, 34); GW = 44
    src = ((4,5,6,7,12), (8,9,10,11,13))
    for q in range(2):
        for i in range(5): A(f"v_lshlrev_b32 v{X[q]+2*i}, 16, v{src[q][i]}\nv_and_b32 v{X[q]+2*i+1}, 0xffff0000, v{src[q][i]}")
    for i, r in enumerate((16,17,18,19,20)): A(f"v_lshlrev_b32 v{GW+2*i}, 16, v{r}\nv_and_b32 v{GW+2*i+1}, 0xffff0000, v{r}")
    A(f"v_readfirstlane_b32 s{sTAG}, v21")
    A(f"v_readlane_b32 s68, v{X[0]}, 0\nv_readlane_b32 s70, v{X[1]}, 0")
    A(f"s_add_u32 s{sTAG}, s{sTAG}, 1\ns_mov_b32 s69, s68\ns_mov_b32 s71, s70")
    A(f"s_and_b32 s72, s3, 1\ns_lshl_b32 s72, s72, 7\ns_add_u32 s72, s72, s{sLB}\ns_add_u32 s72, s72, {STG}")
    A("v_add_u32 v22, s72, v14\nv_add_u32 v23, s72, v15")
    A("ds_write_b128 v22, v[4:7] offset:2816\nds_write_b32 v23, v12 offset:2816\nds_write_b128 v22, v[8:11] offset:4160\nds_write_b32 v23, v13 offset:4160")
    for q in range(2):
        D = 54 + 20*q; T = 64 + 20*q; c = 68 + 2*q
        for i in range(5): A(f"v_pk_add_f32 v[{D+2*i}:{D+2*i+1}], v[{X[q]+2*i}:{X[q]+2*i+1}], s[{c}:{c+1}] neg_lo:[0,1] neg_hi:[0,1]")
        for i in range(5): A(f"v_pk_mul_f32 v[{T+2*i}:{T+2*i+1}], v[{X[q]+2*i}:{X[q]+2*i+1}], v[{GW+2*i}:{GW+2*i+1}]")
    for q in range(2):
        D = 54 + 20*q; T = 64 + 20*q; S = 94 + 6*q
        A(f"v_pk_mul_f32 v[{S+2}:{S+3}], v[{D}:{D+1}], v[{D}:{D+1}]\nv_pk_add_f32 v[{S}:{S+1}], v[{D}:{D+1}], v[{D+2}:{D+3}]")
        for i in range(5): A(f"v_cvt_pk_bf16_f32 v{T+2*i}, v{T+2*i}, v{T+2*i+1}")
        for i in range(1, 5):
            A(f"v_pk_fma_f32 v[{S+2}:{S+3}], v[{D+2*i}:{D+2*i+1}], v[{D+2*i}:{D+2*i+1}], v[{S+2}:{S+3}]")
            if i >= 2: A(f"v_pk_add_f32 v[{S}:{S+1}], v[{S}:{S+1}], v[{D+2*i}:{D+2*i+1}]")
        for i in range(5): A(f"v_and_b32 v{T+2*i+1}, 0xffff0000, v{T+2*i}\nv_lshlrev_b32 v{T+2*i}, 16, v{T+2*i}")
        A(f"v_pk_add_f32 v[{S+4}:{S+5}], v[{T}:{T+1}], v[{T+2}:{T+3}]\nv_pk_add_f32 v[{T+4}:{T+5}], v[{T+4}:{T+5}], v[{T+6}:{T+7}]")
        A(f"v_pk_add_f32 v[{S+4}:{S+5}], v[{S+4}:{S+5}], v[{T+8}:{T+9}]\nv_pk_add_f32 v[{S+4}:{S+5}], v[{S+4}:{S+5}], v[{T+4}:{T+5}]")
    for q in range(2):
        for n in range(3): A(f"v_add_f32 v{106+2*n+q}, v{94+6*q+2*n}, v{95+6*q+2*n}")
    for n in range(3): A(f"v_permlane32_swap_b32 v{106+2*n}, v{107+2*n}")
    for n in range(3): A(f"v_add_f32 v{106+2*n}, v{106+2*n}, v{107+2*n}")
    for ctl in ("quad_perm:[1,0,3,2]", "quad_perm:[2,3,0,1]", "row_half_mirror", "row_mirror"):
        for n in range(3): A(f"v_add_f32_dpp v{106+2*n}, v{106+2*n}, v{106+2*n} {ctl} row_mask:0xf bank_mask:0xf")
    for n in range(3): A(f"v_mov_b32 v{107+2*n}, v{106+2*n}")
    A("v_mov_b32 v112, s68\ns_mov_b32 exec_lo, 0\nv_mov_b32 v112, s70\ns_mov_b32 exec_lo, -1")
    for n in range(3): A(f"v_permlane16_swap_b32 v{106+2*n}, v{107+2*n}")
    for n in range(3): A(f"v_add_f32 v{106+2*n}, v{106+2*n}, v{107+2*n}")
    inv = f32bits(1/640)
    A(f"v_mul_f32 v106, {inv}, v106\nv_mul_f32 v108, {inv}, v108")
    A("v_fma_f32 v108, -v106, v106, v108\nv_add_f32 v106, v106, v112\nv_max_f32 v108, 0, v108")
    A.bfr(110, 110); A.bfr(108, 108); A.bfr(106, 106)
    A(f"v_add_f32 v108, {f32bits(1e-5)}, v108\nv_mul_f32 v110, {f32bits(-L2E)}, v110")
    A.bfr(108, 108)
    A("v_exp_f32 v110, v110\nv_sqrt_f32 v108, v108\nv_readlane_b32 s68, v106, 0\nv_readlane_b32 s70, v106, 32")
    A("v_add_f32 v110, 1.0, v110")
    A.bfr(108, 108)
    A("v_rcp_f32 v110, v110\nv_rcp_f32 v108, v108\ns_mov_b32 s69, s68\ns_mov_b32 s71, s70")
    for q in range(2):
        D = 54 + 20*q; c = 68 + 2*q
        for i in range(5): A(f"v_pk_add_f32 v[{D+2*i}:{D+2*i+1}], v[{X[q]+2*i}:{X[q]+2*i+1}], s[{c}:{c+1}] neg_lo:[0,1] neg_hi:[0,1]")
    A("v_readlane_b32 s68, v108, 0\nv_readlane_b32 s70, v108, 32")
    A.bfr(112, 110)
    for q in range(2):
        D = 54 + 20*q
        for i in range(5): A(f"v_cvt_pk_bf16_f32 v{D+2*i}, v{D+2*i}, v{D+2*i+1}")
    A("s_mov_b32 s69, s68\ns_mov_b32 s71, s70\nv_sub_f32 v113, 1.0, v112")
    for q in range(2):
        D = 54 + 20*q
        for i in range(5): A(f"v_and_b32 v{D+2*i+1}, 0xffff0000, v{D+2*i}\nv_lshlrev_b32 v{D+2*i}, 16, v{D+2*i}")
    A.bfr(113, 113)
    for q in range(2):
        D = 54 + 20*q; c = 68 + 2*q
        for i in range(5): A(f"v_pk_mul_f32 v[{D+2*i}:{D+2*i+1}], v[{D+2*i}:{D+2*i+1}], s[{c}:{c+1}]")
    for q in range(2):
        D = 54 + 20*q; H = 24 + 6*q
        for i in range(5): A(f"v_cvt_pk_bf16_f32 v{H+i}, v{D+2*i}, v{D+2*i+1}")
        A(f"ds_write_b128 v22, v[{H}:{H+3}] offset:{1344*q}\nds_write_b32 v23, v{H+4} offset:{1344*q}")
    A.S("ln")
    A.arrive(0, 36)
    A("v_lshrrev_b32 v37, 4, v2\nv_bfe_u32 v38, v2, 2, 2\nv_and_b32 v39, 3, v2\nv_and_b32 v40, 15, v2")
    A(f"v_lshrrev_b32 v41, 1, v38\nv_mul_u32_u24 v41, {32768+128}, v41\nv_and_b32 v42, 1, v38\nv_mul_u32_u24 v42, 1344, v42")
    A(f"s_lshl_b32 s72, s3, 7\ns_add_u32 s72, s72, {STG}\nv_add3_u32 v41, v41, v42, s72\nv_lshl_add_u32 v41, v37, 5, v41\nv_lshl_add_u32 v41, v39, 3, v41")
    A("v_add_u32 v42, 0x10000, v41")
    A("s_cmp_ge_u32 s3, 2\ns_cselect_b32 s72, 1536, 0\nv_add_u32 v43, s72, v41\nv_add_u32 v44, s72, v42")
    A("s_lshl_b32 s72, s3, 12\nv_lshlrev_b32 v45, 10, v37\nv_lshl_add_u32 v45, v40, 4, v45\nv_add_u32 v45, s72, v45")
    A("s_lshr_b32 s72, s84, 2\ns_mul_i32 s72, s72, 81920\ns_and_b32 s73, s84, 3\ns_lshl_b32 s73, s73, 8\ns_add_u32 s72, s72, s73")
    A.srd(20, pWS, 0x500000, HU)
    A.srd(32, pWS, 2048*8, GATE)
    A("v_lshrrev_b32 v46, 5, v2\nv_lshlrev_b32 v46, 3, v46\ns_lshl_b32 s73, s85, 3")
    A("s_mov_b32 exec_lo, 1\ns_mov_b32 exec_hi, 1\nbuffer_store_dwordx2 v[112:113], v46, s[32:35], s73 offen sc1\ns_mov_b64 exec, -1")
    A(f"s_add_u32 s{sBAR}, s{sBAR}, 4")
    A.waitge(0, f"s{sBAR}", 36)
    for i in range(5):
        a0, a1 = (43, 44) if i == 2 else (41, 42)
        off = i*512 + (1536 if i >= 3 else 0)
        A(f"ds_read_b64_tr_b16 v[{48+4*i}:{49+4*i}], v{a0} offset:{off}\nds_read_b64_tr_b16 v[{50+4*i}:{51+4*i}], v{a1} offset:{off}")
    for i in range(5):
        A(f"s_waitcnt lgkmcnt({8-2*i})\nbuffer_store_dwordx4 v[{48+4*i}:{51+4*i}], v45, s[20:23], s72 offen sc1")
        if i < 4: A("s_add_u32 s72, s72, 16384")
    A.S("st")
    A.arrive(4, 36)
    A("s_waitcnt vmcnt(0)")
    A.S("ack1")
    A.gbar(36)
    A.S("bar1")
    A("s_cmp_lg_u32 s3, 0\ns_cbranch_scc1 L_noflag1")
    A(f"s_lshl_b32 s72, s84, 7\ns_add_u32 s72, s72, {F1}")
    A.setflag("s72", 36)
    A("L_noflag1:")
    A(f"v_lshlrev_b32 v{vA0}, 4, v2\nv_add_u32 v{vA1}, 4096, v{vA0}")
    A(f"v_lshrrev_b32 v{t0}, 4, v2\nv_bfe_u32 v{t1}, v2, 2, 2")
    A(f"v_lshlrev_b32 v{vT}, 10, v{t0}\nv_lshl_add_u32 v{vT}, v{t1}, 7, v{vT}")
    A(f"v_and_b32 v{t0}, 1, v{t0}\nv_lshlrev_b32 v{t0}, 1, v{t0}\nv_lshrrev_b32 v{t1}, 1, v{t1}\nv_or_b32 v{t0}, v{t0}, v{t1}")
    A(f"v_lshl_add_u32 v{vT}, v{t0}, 5, v{vT}\nv_and_b32 v{t1}, 3, v2\nv_lshl_add_u32 v{vT}, v{t1}, 3, v{vT}\nv_add_u32 v{t0}, s{sLB}, v{vT}")
    for a in range(4):
        A(f"s_add_u32 s68, s3, {a}\ns_and_b32 s68, s68, 3\ns_lshl_b32 s68, s68, 5\nv_xor_b32 v{vT+a}, s68, v{t0}")
    A(f"s_mul_i32 s68, s{sDT}, 5120")
    A.srd(16, pWS, 0x500000, "s68")
    A(f"s_cmp_lg_u32 s{sPH}, 0\ns_cbranch_scc1 L_freecu")
    A(f"v_lshrrev_b32 v{E}, 4, v2\nv_lshlrev_b32 v{E}, 3, v{E}\ns_lshl_b32 s68, s3, 5\ns_lshl_b32 s69, s{sNT}, 7\ns_add_u32 s68, s68, s69\nv_add_u32 v{E}, s68, v{E}")
    A(f"global_load_dwordx2 v[{E}:{E+1}], v{E}, s[{pB1}:{pB1+1}]")
    A(f"s_mul_i32 s{sA}, s3, 81920\ns_mov_b32 s{sAstep}, {4*81920}\ns_mov_b32 s{sAend}, {64*81920}\ns_mov_b32 s{sAsz}, 0x500000\ns_mov_b32 s{sN}, 16")
    def act_touch_addr(stride):
        A(f"s_lshr_b32 s68, s{sJ}, 2\ns_lshl_b32 s68, s68, 6\nv_add_u32 v44, s68, v2\ns_mov_b32 s68, {stride}")
        for r in range(5):
            A(f"v_mul_u32_u24 v45, 1639, v44\nv_lshrrev_b32 v45, 16, v45\nv_mul_u32_u24 v46, 40, v45\nv_sub_u32 v46, v44, v46")
            A(f"v_mul_lo_u32 v45, v45, s68\nv_lshl_add_u32 v{48+r}, v46, 7, v45\nv_add_u32 v44, 512, v44")
    def act_touch():
        for r in range(5): A(f"buffer_load_dword v231, v{48+r}, s[16:19], 0 offen sc1")
    def waitF1(inchan=False):
        l1 = A.lab("f"); l2 = A.lab("f")
        A(f"s_cmp_lg_u32 s3, 0\ns_cbranch_scc1 {l1}")
        A(f"v_lshlrev_b32 v36, 7, v2\ns_mov_b32 s51, {F1}\ns_mov_b32 s50, {F1+8192}\ns_mov_b32 s84, {F1+16384}\ns_mov_b32 s85, {F1+24576}")
        if acttouch: act_touch_addr(81920)
        A.poll([(36, "s51"), (36, "s50"), (36, "s84"), (36, "s85")], [40, 41, 42, 43])
        if acttouch: act_touch()
        A(f"v_mov_b32 v36, s{sTAG}\nds_write_b32 v{vSY}, v36 offset:12")
        A.arrive(1, 36)
        A(f"s_cmp_lg_u32 s2, 0\ns_cbranch_scc1 {l2}")
        A.setflag("0", 36)
        A(f"s_branch {l2}\n{l1}:")
        A.waitge(1, 1, 36, sleep=1)
        A(f"ds_read_b32 v36, v{vSY} offset:12\ns_waitcnt lgkmcnt(0)\nv_readfirstlane_b32 s{sTAG}, v36")
        A(f"{l2}:")
    A("L_waitf1:")
    for i in range(80): A(f"v_mov_b32 v{ACC0+i}, 0")
    waitF1()
    A.S("poll1")
    A.waitge(6, 1, 36)
    A.S("seen1")
    A(f"s_cmp_lg_u32 s{sPH}, 0\ns_cbranch_scc1 L_chan_ret")
    A("L_gemm:")
    if 'a' in dbg: A(f"s_mov_b32 s{sAsz}, 0")
    if 's' in dbg: A(f"s_mov_b32 s{sAstep}, 0")
    if 'w' in dbg: A(f"s_mov_b32 s{sWend}, 0")
    def act_addr():
        A(f"s_cmp_lt_u32 s{sA}, s{sAend}\ns_cselect_b32 s18, s{sAsz}, 0")
    def act(stage, db):
        r = ACT0 + stage*20 + db*4
        if db < 4: A(f"buffer_load_dwordx4 v[{r}:{r+3}], v{vA0}, s[16:19], s{sA} offen offset:{db*1024} {actmod}")
        else: A(f"buffer_load_dwordx4 v[{r}:{r+3}], v{vA1}, s[16:19], s{sA} offen {actmod}\ns_add_u32 s{sA}, s{sA}, s{sAstep}")
    def trr(buf, slot):
        for a in range(4):
            r = WF0 + buf*16 + a*4
            A(f"ds_read_b64_tr_b16 v[{r}:{r+1}], v{vT+a} offset:{slot*4096}\nds_read_b64_tr_b16 v[{r+2}:{r+3}], v{vT+a} offset:{slot*4096+512}")
    for st in range(4):
        act_addr()
        for db in range(5): act(st, db)
    A(f"s_mov_b32 s{sIt}, 0")
    trr(0, 0)
    def mfmas(u, db):
        b = ACT0 + u*20 + db*4
        for a in range(4):
            c = ACC0 + (a*5+db)*4; w = WF0 + (u%2)*16 + a*4
            if 'm' not in dbg or a == 0: A(f"v_mfma_f32_16x16x32_bf16 v[{c}:{c+3}], v[{w}:{w+3}], v[{b}:{b+3}], v[{c}:{c+3}]")
    A(".p2align 3\nL_loop:")
    for u in range(4):
        if u == 2: A("L_loop2:")
        A("s_waitcnt vmcnt(15)")
        if u == 3:
            for a in range(4): A(f"v_xor_b32 v{vT+a}, 0x4000, v{vT+a}")
        trr((u+1) % 2, (u+1) % 4)
        sk = A.lab("s")
        A(f"s_cmp_lt_u32 s{sW}, s{sWend}\ns_waitcnt lgkmcnt(8)\ns_cbranch_scc0 {sk}")
        dma_step(A, u*4096)
        A(f"{sk}:")
        act_addr()
        for db in range(5):
            mfmas(u, db)
            act(u, db)
    A(f"s_xor_b32 s{sM}, s{sM}, 0x4000\ns_and_b32 s{sIt}, s{sIt}, 12\ns_add_u32 s{sIt}, s{sIt}, 4\ns_cmp_lt_u32 s{sIt}, 12\ns_cbranch_scc1 L_loop")
    for u in range(4):
        A(f"s_waitcnt vmcnt({15-5*u})")
        if u < 3:
            trr((u+1) % 2, u+1)
            A("s_waitcnt lgkmcnt(8)")
        else: A("s_waitcnt lgkmcnt(0)")
        for db in range(5): mfmas(u, db)
    A(f"s_cmp_lg_u32 s{sPH}, 0\ns_cbranch_scc1 L_end2")
    A.S("loop1")
    A.arrive(5, 4)
    def w2_setup():
        A(f"s_lshr_b32 s{sNT}, s{sX}, 1\ns_lshl_b32 s{sNT}, s{sNT}, 3\ns_lshr_b32 s68, s{sJ}, 2\ns_add_u32 s{sNT}, s{sNT}, s68")
        w_setup(A, pW2, 4096, 54)
        A(f"s_mov_b32 s{sM}, s{sLB}")
    A(f"s_mov_b32 s50, s{sNT}")
    w2_setup()
    A("s_branch L_xchg")
    A("L_end2:")
    A.S("loop2")
    A.waitge(7, 2, 4, sleep=1)
    A.S("f3")
    A(f"s_mul_i32 s68, s{sDT}, {80*4096}\ns_lshl_b32 s85, s84, 1\ns_add_u32 s68, s68, s85")
    for db in range(5):
        A(f"buffer_load_dwordx2 v[{E+10+2*db}:{E+11+2*db}], v{E+23}, s[28:31], s68 offen sc1")
        if db < 4: A("s_add_u32 s68, s68, 65536")
    A("L_xchg:")
    A(f"v_add_u32 v{t0}, s{sLB}, v{vA0}")
    for db in range(5):
        for a in range(1, 4):
            c = ACC0 + (a*5+db)*4
            A(f"ds_write_b128 v{t0}, v[{c}:{c+3}] offset:{8192+((a-1)*5+db)*1024}")
    A.S("xw")
    A.arrive(0, 4)
    for a in range(1, 4):
        A(f"s_sub_u32 s68, s3, {a}\ns_and_b32 s68, s68, 3\ns_lshl_b32 s68, s68, 15\nv_add_u32 v{4+a}, s68, v{vA0}")
    A(f"s_add_u32 s{sBAR}, s{sBAR}, 4")
    A.waitge(0, f"s{sBAR}", 4)
    A.S("xb")
    for a in range(1, 4):
        for db in range(5):
            r = ACT0 + ((a-1)*5+db)*4
            A(f"ds_read_b128 v[{r}:{r+3}], v{4+a} offset:{8192+((a-1)*5+db)*1024}")
    for a in range(1, 4):
        A(f"s_waitcnt lgkmcnt({(3-a)*5})")
        for db in range(5):
            r = ACT0 + ((a-1)*5+db)*4; c = ACC0 + db*4
            A(f"v_pk_add_f32 v[{c}:{c+1}], v[{c}:{c+1}], v[{r}:{r+1}]\nv_pk_add_f32 v[{c+2}:{c+3}], v[{c+2}:{c+3}], v[{r+2}:{r+3}]")
    b = 4
    A(f"v_lshlrev_b32 v{b}, 16, v{E}\nv_and_b32 v{b+1}, 0xffff0000, v{E}\nv_lshlrev_b32 v{b+2}, 16, v{E+1}\nv_and_b32 v{b+3}, 0xffff0000, v{E+1}")
    R = 36
    if fastr:
        for db in range(5):
            c = ACC0 + db*4; t = R + db*4
            A(f"v_pk_add_f32 v[{t}:{t+1}], v[{c}:{c+1}], v[{b}:{b+1}]\nv_pk_add_f32 v[{t+2}:{t+3}], v[{c+2}:{c+3}], v[{b+2}:{b+3}]")
    else:
        for db in range(5):
            c = ACC0 + db*4; t = R + db*4
            A(f"v_cvt_pk_bf16_f32 v{t}, v{c}, v{c+1}\nv_cvt_pk_bf16_f32 v{t+2}, v{c+2}, v{c+3}")
        for db in range(5):
            t = R + db*4
            A(f"v_and_b32 v{t+1}, 0xffff0000, v{t}\nv_lshlrev_b32 v{t}, 16, v{t}\nv_and_b32 v{t+3}, 0xffff0000, v{t+2}\nv_lshlrev_b32 v{t+2}, 16, v{t+2}")
        for db in range(5):
            t = R + db*4
            A(f"v_pk_add_f32 v[{t}:{t+1}], v[{t}:{t+1}], v[{b}:{b+1}]\nv_pk_add_f32 v[{t+2}:{t+3}], v[{t+2}:{t+3}], v[{b+2}:{b+3}]")
        for db in range(5):
            t = R + db*4
            A(f"v_cvt_pk_bf16_f32 v{t}, v{t}, v{t+1}\nv_cvt_pk_bf16_f32 v{t+2}, v{t+2}, v{t+3}")
        for db in range(5):
            t = R + db*4
            A(f"v_and_b32 v{t+1}, 0xffff0000, v{t}\nv_lshlrev_b32 v{t}, 16, v{t}\nv_and_b32 v{t+3}, 0xffff0000, v{t+2}\nv_lshlrev_b32 v{t+2}, 16, v{t+2}")
    A(f"s_cmp_lg_u32 s{sPH}, 0\ns_cbranch_scc1 L_final")
    A.S("xchg1")
    k0 = math.sqrt(2/math.pi); k1 = 0.044715
    c0 = -2*k0*L2E; c1 = c0*k1
    A(f"s_mov_b32 s68, {f32bits(c1)}\ns_mov_b32 s69, s68\nv_mov_b32 v8, {f32bits(c0)}\nv_mov_b32 v9, v8")
    Z = 56
    for i in range(10): A(f"v_pk_mul_f32 v[{Z+2*i}:{Z+2*i+1}], v[{R+2*i}:{R+2*i+1}], v[{R+2*i}:{R+2*i+1}]")
    for i in range(10): A(f"v_pk_fma_f32 v[{Z+2*i}:{Z+2*i+1}], v[{Z+2*i}:{Z+2*i+1}], s[68:69], v[8:9]")
    for i in range(10): A(f"v_pk_mul_f32 v[{Z+2*i}:{Z+2*i+1}], v[{Z+2*i}:{Z+2*i+1}], v[{R+2*i}:{R+2*i+1}]")
    for i in range(20): A(f"v_exp_f32 v{Z+i}, v{Z+i}")
    for i in range(20): A(f"v_add_f32 v{Z+i}, 1.0, v{Z+i}")
    for i in range(20): A(f"v_rcp_f32 v{Z+i}, v{Z+i}")
    A(f"s_mul_i32 s68, s{sDT}, 5120\ns_add_u32 s68, s68, {GO}")
    A.srd(16, pWS, 54*40960, "s68")
    A("s_lshl_b32 s68, s50, 1\ns_lshr_b32 s69, s3, 1\ns_add_u32 s68, s68, s69\ns_mul_i32 s68, s68, 40960\ns_and_b32 s69, s3, 1\ns_lshl_b32 s69, s69, 9\ns_add_u32 s68, s68, s69\ns_add_u32 s69, s68, 4096")
    A("v_bfe_u32 v10, v2, 4, 1\nv_lshlrev_b32 v10, 10, v10\nv_lshrrev_b32 v11, 5, v2\nv_lshl_add_u32 v10, v11, 8, v10\nv_and_b32 v11, 15, v2\nv_lshl_add_u32 v10, v11, 4, v10")
    for i in range(10): A(f"v_pk_mul_f32 v[{Z+2*i}:{Z+2*i+1}], v[{Z+2*i}:{Z+2*i+1}], v[{R+2*i}:{R+2*i+1}]")
    P = 12
    for i in range(10): A(f"v_cvt_pk_bf16_f32 v{P+i}, v{Z+2*i}, v{Z+2*i+1}")
    for p in range(3): A(f"v_permlane16_swap_b32 v{P+4*p}, v{P+4*p+2}\nv_permlane16_swap_b32 v{P+4*p+1}, v{P+4*p+3}")
    A(f"buffer_store_dwordx4 v[{P}:{P+3}], v10, s[16:19], s68 offen sc1\nbuffer_store_dwordx4 v[{P+4}:{P+7}], v10, s[16:19], s68 offen offset:2048 sc1")
    A(f"s_mov_b32 exec_lo, 0xffff\ns_mov_b32 exec_hi, 0xffff\nbuffer_store_dwordx4 v[{P+8}:{P+11}], v10, s[16:19], s69 offen sc1\ns_mov_b64 exec, -1")
    A.S("gst")
    A("s_waitcnt vmcnt(0)")
    A.S("ack2")
    A.gbar(4)
    A("s_cmp_lg_u32 s3, 0\ns_cbranch_scc1 L_noflag2")
    A(f"s_lshl_b32 s72, s{sDT}, 5\ns_add_u32 s72, s72, s50\ns_lshl_b32 s72, s72, 7\ns_add_u32 s72, s72, {F2}")
    A.setflag("s72", 4)
    A("L_noflag2:")
    A.S("flag2")
    A.arrive(5, 4)
    A("L_pre2:")
    A(f"s_mov_b32 s{sPH}, 1\ns_add_u32 s{sM}, s{sLB}, 0x4000")
    for a in range(4): A(f"v_or_b32 v{vT+a}, 0x4000, v{vT+a}")
    A(f"s_mul_i32 s68, s{sDT}, 5120\ns_add_u32 s68, s68, {GO}")
    A.srd(16, pWS, 54*40960, "s68")
    A(f"s_mul_i32 s{sA}, s3, 40960\ns_mov_b32 s{sAstep}, {4*40960}\ns_mov_b32 s{sAend}, {54*40960}\ns_mov_b32 s{sAsz}, {54*40960}\ns_mov_b32 s{sN}, 14")
    A(f"s_lshl_b32 s84, s{sNT}, 6\ns_lshl_b32 s68, s3, 4\ns_add_u32 s84, s84, s68")
    A.srd(28, pWS, SZ_X, AT); A.srd(32, pWS, 2048*8, GATE)
    A(f"v_lshrrev_b32 v{E+20}, 4, v2\nv_and_b32 v{E+21}, 15, v2")
    A(f"s_lshl_b32 s85, s84, 1\nv_lshl_add_u32 v{E}, v{E+20}, 3, s85")
    A(f"v_lshlrev_b32 v{E+22}, 5, v{E+20}\ns_lshl_b32 s68, s84, 3")
    A(f"global_load_dwordx2 v[{E}:{E+1}], v{E}, s[{pB2}:{pB2+1}]")
    A(f"buffer_load_dwordx4 v[{E+2}:{E+5}], v{E+22}, s[32:35], s68 offen sc1\nbuffer_load_dwordx4 v[{E+6}:{E+9}], v{E+22}, s[32:35], s68 offen offset:16 sc1")
    A(f"v_lshlrev_b32 v{E+23}, 12, v{E+21}\nv_lshl_add_u32 v{E+23}, v{E+20}, 3, v{E+23}")
    for i in range(80): A(f"v_mov_b32 v{ACC0+i}, 0")
    A("s_cmp_lg_u32 s3, 0\ns_cbranch_scc1 L_w2")
    A(f"v_min_u32 v36, 26, v2\nv_lshlrev_b32 v36, 7, v36")
    A(f"s_lshl_b32 s50, s{sDT}, 12\ns_add_u32 s50, s50, {F2}")
    if acttouch: act_touch_addr(40960)
    A.poll([(36, "s50")], [40])
    if acttouch: act_touch()
    A.S("poll2")
    A.arrive(2, 36)
    A("L_w2:")
    A.waitge(2, 2, 36, sleep=1)
    A.S("seen2")
    for st in (2, 3, 0, 1):
        act_addr()
        for db in range(5): act(st, db)
    A(f"s_mov_b32 s{sIt}, 2")
    trr(0, 2)
    A("s_branch L_loop2")
    A("L_final:")
    A.S("xchg2")
    A("s_waitcnt vmcnt(0)")
    A.srd(28, pOUT, SZ_X)
    A(f"s_mov_b32 s85, s{sLB}")
    A(f"v_mul_u32_u24 v8, 704, v{E+20}\nv_lshl_add_u32 v8, v{E+21}, 1, v8\nv_add_u32 v8, s85, v8")
    Z = 56
    for db in range(5):
        a = E+10+2*db; z = Z + 4*db
        A(f"v_lshlrev_b32 v{z}, 16, v{a}\nv_and_b32 v{z+1}, 0xffff0000, v{a}\nv_lshlrev_b32 v{z+2}, 16, v{a+1}\nv_and_b32 v{z+3}, 0xffff0000, v{a+1}")
    for db in range(5):
        for r in range(4): A(f"v_mul_f32 v{R+4*db+r}, v{R+4*db+r}, v{E+3+2*r}\nv_mul_f32 v{Z+4*db+r}, v{Z+4*db+r}, v{E+2+2*r}")
    for i in range(20): A(f"v_cvt_pk_bf16_f32 v{R+2*i}, v{R+2*i}, v{R+2*i+1}")
    for i in range(20): A(f"v_and_b32 v{R+2*i+1}, 0xffff0000, v{R+2*i}\nv_lshlrev_b32 v{R+2*i}, 16, v{R+2*i}")
    for i in range(10): A(f"v_pk_add_f32 v[{R+2*i}:{R+2*i+1}], v[{R+2*i}:{R+2*i+1}], v[{Z+2*i}:{Z+2*i+1}]")
    for db in range(5):
        t = R + 4*db
        A(f"v_cvt_pk_bf16_f32 v{t}, v{t}, v{t+1}\nv_cvt_pk_bf16_f32 v{t+1}, v{t+2}, v{t+3}")
        A(f"ds_write_b16 v8, v{t} offset:{32*db}\nds_write_b16_d16_hi v8, v{t} offset:{32*db+176}")
        A(f"ds_write_b16 v8, v{t+1} offset:{32*db+352}\nds_write_b16_d16_hi v8, v{t+1} offset:{32*db+528}")
    A(f"s_mul_i32 s68, s84, 1280\ns_mul_i32 s69, s{sDT}, 160\ns_add_u32 s68, s68, s69")
    for i in range(3):
        c, row, col = 80+4*i, 81+4*i, 82+4*i
        A(f"v_add_u32 v{c}, {64*i}, v2\nv_mul_u32_u24 v{row}, 205, v{c}\nv_lshrrev_b32 v{row}, 11, v{row}")
        A(f"v_mul_u32_u24 v{col}, 10, v{row}\nv_sub_u32 v{col}, v{c}, v{col}\nv_lshlrev_b32 v{col}, 4, v{col}")
        A(f"v_mul_u32_u24 v{c}, 176, v{row}\nv_add3_u32 v{c}, v{c}, v{col}, s85")
        A(f"v_mul_u32_u24 v{row}, 1280, v{row}\nv_add_u32 v{row}, v{row}, v{col}")
    A("s_waitcnt lgkmcnt(0)")
    A("ds_read_b128 v[96:99], v80\nds_read_b128 v[100:103], v84\nds_read_b128 v[104:107], v88")
    A("s_waitcnt lgkmcnt(2)\nbuffer_store_dwordx4 v[96:99], v81, s[28:31], s68 offen")
    A("s_waitcnt lgkmcnt(1)\nbuffer_store_dwordx4 v[100:103], v85, s[28:31], s68 offen")
    A("s_waitcnt lgkmcnt(0)\ns_mov_b32 exec_hi, 0\nbuffer_store_dwordx4 v[104:107], v89, s[28:31], s68 offen")
    A.st_end()
    A("s_endpgm")
    A("L_freecu:")
    A.arrive(5, 36)
    w2_setup()
    A(f"s_lshr_b32 s68, s{sX}, 1\ns_cmp_eq_u32 s68, 3\ns_cselect_b32 s68, 24, 28\ns_sub_u32 s68, s{sJ}, s68")
    A(f"s_cmp_ge_u32 s68, 4\ns_cbranch_scc1 L_waitf1")
    A(f"s_lshl_b32 s22, s68, 2\ns_add_u32 s22, s22, s3\ns_lshl_b32 s68, s{sX}, 4\ns_add_u32 s22, s22, s68\ns_add_u32 s22, s22, 512")
    A(f"s_add_u32 s23, s{sLB}, 8192\ns_setprio 0\ns_mov_b32 s0, 1\ns_branch L_chan")
    A("L_chan_ret:")
    if prio: A("s_setprio 1")
    A.arrive(5, 36)
    A("s_branch L_pre2")
    A("L_lwave:")
    A("s_waitcnt lgkmcnt(0)")
    A.srd(24, pWS, FLSZ, FL)
    w_setup(A, pW1, 3456, 64, loader=True)
    A("s_barrier")
    def lsteps(first_slot, n):
        l = A.lab("l")
        A(f"s_mov_b32 s{sM}, {first_slot*4096}\ns_mov_b32 s{sIt}, 0\n{l}:")
        for q in range(16):
            A(f"s_add_u32 m0, s{sM}, {(q>>2)*32768 + (q&3)*1024}")
            if q == 0: A("s_nop 0")
            elif q == 1: A(f"s_add_u32 s81, s{sW}, s{sW8}")
            else: A(f"s_add_u32 s81, s81, s{sW8}")
            A(f"buffer_load_dwordx4 v{vW1 if q%2 else vW0}, s[12:15], s{81 if q else sW} offen lds")
        A(f"s_add_u32 s{sW}, s{sW}, s{sWstep}\ns_add_u32 s{sM}, s{sM}, 4096\ns_and_b32 s{sM}, s{sM}, 0x7fff\ns_add_u32 s{sIt}, s{sIt}, 1\ns_cmp_lt_u32 s{sIt}, {n}\ns_cbranch_scc1 {l}")
    def wtouch(stride, nrows):
        q = nrows // 4
        A(f"s_and_b32 s68, s{sJ}, 3\ns_mul_i32 s68, s68, {q*stride}\ns_add_u32 s68, s68, s{sW}\nv_mul_u32_u24 v36, {stride}, v2")
        for i in range((q+63)//64):
            if (i+1)*64 > q: A(f"s_mov_b64 exec, {hex((1 << (q-i*64))-1)}" if q-i*64 < 32 else f"s_mov_b32 exec_hi, {hex((1 << (q-i*64-32))-1)}")
            A(f"buffer_load_dword v231, v36, s[12:15], s68 offen\ns_add_u32 s68, s68, {64*stride}")
        A("s_mov_b64 exec, -1")
    if codetouch:
        A("s_getpc_b64 s[68:69]\nL_pc:\ns_sub_u32 s68, s68, L_pc-" + KN + "\ns_subb_u32 s69, s69, 0\nv_lshlrev_b32 v22, 7, v2")
        for i in range(3): A("v_min_u32 v23, L_codeend-" + KN + "-4, v22\nglobal_load_dword v231, v23, s[68:69]\nv_add_u32 v22, 0x2000, v22")
    A(f"s_cmp_lg_u32 s{sPH}, 0\ns_cbranch_scc1 L_l2")
    lsteps(0, npre)
    if touch1: wtouch(3456, 2048-128*npre)
    A.waitge(4, 4, 36, sleep=1)
    if lateack: A.waitge(0, 8, 36, sleep=1)
    lsteps(npre, 8-npre)
    A("s_waitcnt vmcnt(0)")
    A("L_l2:")
    A.arrive(6, 36)
    A.S("Lw1")
    A(f"s_lshr_b32 s{sNT}, s{sX}, 1\ns_lshl_b32 s{sNT}, s{sNT}, 3\ns_lshr_b32 s68, s{sJ}, 2\ns_add_u32 s{sNT}, s{sNT}, s68")
    w_setup(A, pW2, 4096, 54, loader=True)
    if w2l2:
        A(f"s_cmp_eq_u32 s{sPH}, 0\ns_cbranch_scc1 L_l3")
        A.waitge(4, 4, 36, sleep=1)
        A(f"s_and_b32 s68, s{sJ}, 3\ns_mul_i32 s68, s68, {432*4096}\ns_lshr_b32 s69, s{sX}, 1\ns_lshl_b32 s69, s69, 10\ns_add_u32 s68, s68, s69")
        A("v_lshrrev_b32 v36, 3, v2\nv_lshlrev_b32 v36, 12, v36\nv_and_b32 v37, 7, v2\nv_lshl_add_u32 v36, v37, 7, v36")
        A(f"s_mov_b32 s{sIt}, 0\nL_l2loop:\nbuffer_load_dword v231, v36, s[12:15], s68 offen\ns_add_u32 s68, s68, 32768\ns_add_u32 s{sIt}, s{sIt}, 1\ns_waitcnt vmcnt({w2depth})\ns_cmp_lt_u32 s{sIt}, 54\ns_cbranch_scc1 L_l2loop")
        A("L_l3:")
    A.waitge(5, 4, 36, sleep=2)
    A.S("Lw2a")
    if t2early: wtouch(4096, 1728)
    lsteps(6, 4)
    A.waitge(5, 8, 36, sleep=1)
    lsteps(2, 4)
    if touch2 and not t2early: wtouch(4096, 704)
    A("s_waitcnt vmcnt(%d)" % (3 if (touch2 and not t2early) else 0))
    A.arrive(2, 36)
    A.S("Lw2")
    A(f"ds_read_b32 v36, v{vSY} offset:12\nv_lshlrev_b32 v37, 7, v2\nv_and_b32 v38, 15, v2\nv_lshlrev_b32 v38, 7, v38")
    A(f"s_mul_i32 s51, s{sDT}, {80*128}\ns_add_u32 s51, s51, {F3}\ns_add_u32 s81, s51, 8192")
    A(f"s_waitcnt lgkmcnt(0)\nv_readfirstlane_b32 s{sTAG}, v36")
    A.poll([(37, "s51"), (38, "s81")], [40, 41], sleep=8)
    A.srd(28, pWS, SZ_X, AT)
    A(f"s_mul_i32 s68, s{sDT}, {80*4096}\ns_lshl_b32 s69, s{sNT}, 7\ns_add_u32 s68, s68, s69\nv_lshlrev_b32 v36, 12, v2\nv_lshlrev_b32 v37, 5, v38")
    A(f"buffer_load_dword v231, v36, s[28:31], s68 offen sc1\ns_add_u32 s68, s68, {64*4096}\nbuffer_load_dword v231, v37, s[28:31], s68 offen sc1")
    A(f"s_mov_b64 exec, 1\nv_mov_b32 v36, 2\nds_add_u32 v{vSY}, v36 offset:28\ns_mov_b64 exec, -1")
    A.S("Lf3")
    A.st_end()
    A("s_endpgm")
    A("L_cwave:")
    A(f"s_lshl_b32 s22, s{sX}, 6\ns_lshl_b32 s68, s{sJ}, 1\ns_add_u32 s22, s22, s68\ns_sub_u32 s68, s3, 4\ns_add_u32 s22, s22, s68")
    A(f"s_mul_i32 s23, s68, {CSZ}\ns_add_u32 s23, s23, {CREG}")
    A("s_waitcnt lgkmcnt(0)")
    A.srd(24, pWS, FLSZ, FL)
    A.srd(16, pWS, 0x500000)
    A("s_barrier")
    A("s_mov_b32 s0, 0")
    A("L_chan:")
    A("s_lshl_b32 s68, s22, 8\nv_lshl_add_u32 v3, v2, 2, s68")
    for i, p in enumerate((pLA, pAI, pCR, pCI)): A(f"global_load_dword v{4+i}, v3, s[{p}:{p+1}]")
    A(f"s_lshr_b32 s68, s22, 1\ns_lshl_b32 s68, s68, 2\ns_load_dword s20, s[{pLDT}:{pLDT+1}], s68\ns_load_dword s21, s[{pDS}:{pDS+1}], s68")
    sL, sLlo, sLn2, sI, sIlo = 28, 29, 30, 31, 32
    A(f"s_mov_b32 s{sL}, {f32bits(L2E_HI)}\ns_mov_b32 s{sLlo}, {f32bits(L2E_LO)}\ns_mov_b32 s{sLn2}, {f32bits(math.log(2))}\ns_mov_b32 s{sI}, {f32bits(I2P_HI)}\ns_mov_b32 s{sIlo}, {f32bits(I2P_LO)}")
    A("s_mov_b32 s34, 0x46800000\ns_mov_b32 s35, 0x46800000")
    A("v_lshl_add_u32 v8, v2, 2, s23")
    A("v_and_b32 v9, 15, v2\nv_lshrrev_b32 v10, 4, v2")
    A("v_mul_u32_u24 v11, 272, v9\nv_lshl_add_u32 v11, v10, 4, v11\nv_add_u32 v11, s23, v11")
    ACC = 24
    for i in range(12): A(f"v_mov_b32 v{ACC+i}, 0")
    A("s_and_b32 s68, s22, 1\ns_lshl_b32 s68, s68, 4")
    A("s_waitcnt lgkmcnt(0)")
    A("s_lshr_b32 s20, s20, s68\ns_lshl_b32 s20, s20, 16\ns_lshr_b32 s21, s21, s68\ns_lshl_b32 s21, s21, 16")
    A("v_mov_b32 v12, s20")
    A.exp_precise(12, 12, 13, 14, sL, sLlo, sLn2)
    A.bfr(12, 12)
    A("s_waitcnt vmcnt(0)")
    A.S("Cpar")
    A("v_lshlrev_b32 v13, 16, v6\nv_lshlrev_b32 v14, 16, v7\nv_and_b32 v15, 0x7fff0000, v6\nv_and_b32 v16, 0x7fff0000, v7")
    A("v_max3_f32 v13, |v13|, |v14|, v15\nv_max_f32 v13, v13, v16")
    for ctl in ("quad_perm:[1,0,3,2]", "quad_perm:[2,3,0,1]", "row_half_mirror", "row_mirror"):
        A(f"v_max_f32_dpp v13, v13, v13 {ctl} row_mask:0xf bank_mask:0xf")
    for i in range(4): A(f"v_readlane_b32 s{82+i}, v13, {16*i}")
    A("s_max_u32 s82, s82, s83\ns_max_u32 s84, s84, s85\ns_max_u32 s82, s82, s84\ns_lshr_b32 s82, s82, 23\ns_max_u32 s82, s82, 25\ns_min_u32 s82, s82, 254")
    A("s_sub_u32 s83, 265, s82\ns_lshl_b32 s83, s83, 23")
    A("s_sub_u32 s84, s82, 24\ns_lshl_b32 s84, s84, 23")
    A("s_mov_b32 s85, 16")
    E1, E8, H, F = 40, 42, 44, 46
    rowof = {}
    for e in range(8): rowof[(0,e)] = e; rowof[(1,e)] = 8+e
    for n,(i,e) in enumerate([(2,0),(2,4),(3,0),(3,4),(2,2),(2,6),(3,2),(3,6),(4,0),(4,4),(5,0),(5,4),(6,0),(6,4),(7,0),(7,4)]): rowof[(i,e)] = 16+n
    for i in range(8,17): rowof[(i,0)] = 32+i-8
    def cmul(d, x, y):
        return [f"v_pk_mul_f32 v[{d}:{d+1}], v[{x}:{x+1}], v[{y}:{y+1}] op_sel:[0,0] op_sel_hi:[0,1]",
                f"v_pk_fma_f32 v[{d}:{d+1}], v[{x}:{x+1}], v[{y}:{y+1}], v[{d}:{d+1}] op_sel:[1,1,0] op_sel_hi:[1,0,1] neg_lo:[1,0,0]"]
    A("L_kpass:")
    for d, s in ((13,4),(14,5),(F,6),(F+1,7)): A(f"v_lshlrev_b32 v{d}, s85, v{s}\nv_and_b32 v{d}, 0xffff0000, v{d}")
    A.exp_precise(13, 13, 15, 16, sL, sLlo, sLn2)
    A(f"v_mul_f32 v14, v14, v12")
    A.bfr(13, 13)
    A(f"v_mul_f32 v15, s{sI}, v14\nv_mul_f32 v13, v13, v12\nv_fma_f32 v16, v14, s{sI}, -v15\nv_mul_f32 v13, s{sL}, v13\nv_fma_f32 v16, v14, s{sIlo}, v16")
    A(f"v_mul_f32 v{F}, s83, v{F}\nv_mul_f32 v{F+1}, s83, v{F+1}")
    gens = ((1,E1),(8,E8),(128,H))
    for n,(q,Eq) in enumerate(gens): A(f"v_mul_f32 v{17+2*n}, {f32bits(-q)}, v13\nv_mul_f32 v{18+2*n}, {f32bits(q)}, v15")
    for n,(q,Eq) in enumerate(gens): A(f"v_exp_f32 v{17+2*n}, v{17+2*n}\nv_fract_f32 v{18+2*n}, v{18+2*n}\nv_fmamk_f32 v{18+2*n}, v16, {f32bits(q)}, v{18+2*n}")
    for n,(q,Eq) in enumerate(gens): A(f"v_cos_f32 v{Eq}, v{18+2*n}\nv_sin_f32 v{Eq+1}, v{18+2*n}")
    for n,(q,Eq) in enumerate(gens): A(f"v_mul_f32 v{Eq}, v{Eq}, v{17+2*n}\nv_mul_f32 v{Eq+1}, v{Eq+1}, v{17+2*n}")
    def emit(src, row, tmp, neg):
        return [f"v_cvt_pk_f16_f32 v{tmp}, v{src}, {'-' if neg else ''}v{src+1}", f"ds_write_b32 v8, v{tmp} offset:{row*272}"]
    def chain(e, n, pp, tmps):
        out = []; prev = F+2*e
        for i in range(1, n+1):
            d = pp[i % 2]
            out += cmul(d, prev, H) + emit(d, rowof[(i,e)], tmps[i%2], True); prev = d
        return out
    T1 = ["v_mov_b32_e64 v74, s34", f"v_pk_mul_f32 v[62:63], v[{E8}:{E8+1}], s[34:35]", "v_cvt_pk_f16_f32 v74, v74, 0", f"ds_write_b32 v8, v74 offset:{41*272}"] + emit(62, 42, 75, False)
    prev = 62
    for j in range(2, 16):
        d = 62 + 2*((j+1) % 2)
        T1 += cmul(d, prev, E8) + emit(d, 41+j, 74+(j%2), False); prev = d
    T1 += chain(6, 3, (62,64), (74,75))
    T3 = chain(0, 16, (66,68), (76,77)) + chain(2, 3, (66,68), (76,77))
    T2 = emit(F, 0, 78, True)
    for e in range(1, 8): T2 += cmul(F+2*e, F+2*e-2, E1) + emit(F+2*e, e, 78+(e%2), True)
    for n,e in enumerate((1,3,5,7)):
        d = 70+2*(n%2)
        T2 += cmul(d, F+2*e, H) + emit(d, rowof[(1,e)], 78+(n%2), True)
    T2 += chain(4, 7, (70,72), (78,79))
    A(".p2align 3")
    for i in range(max(len(T1),len(T2),len(T3))):
        for T in (T2, T3, T1):
            if i < len(T): A(T[i])
    A("s_waitcnt lgkmcnt(0)")
    for ks in range(4): A(f"ds_read_b128 v[{80+4*ks}:{83+4*ks}], v11 offset:{41*272+ks*64}")
    for T in range(3):
        for ks in range(4): A(f"ds_read_b128 v[{96+16*T+4*ks}:{99+16*T+4*ks}], v11 offset:{T*16*272+ks*64}")
    for T in range(3):
        A(f"s_waitcnt lgkmcnt({8-4*T})")
        for ks in range(4):
            A(f"v_mfma_f32_16x16x32_f16 v[{ACC+4*T}:{ACC+4*T+3}], v[{96+16*T+4*ks}:{99+16*T+4*ks}], v[{80+4*ks}:{83+4*ks}], v[{ACC+4*T}:{ACC+4*T+3}]")
    A("s_sub_u32 s85, s85, 16\ns_cbranch_scc0 L_kpass")
    A("v_mul_f32 v12, s84, v12")
    A("v_lshlrev_b32 v13, 5, v9\nv_add_u32 v13, s23, v13")
    A("v_lshrrev_b32 v14, 1, v10\nv_lshlrev_b32 v14, 9, v14\nv_and_b32 v15, 1, v10\nv_lshl_add_u32 v14, v15, 4, v14\nv_add_u32 v14, v14, v13")
    A("v_max_u32 v15, 1, v10\nv_lshlrev_b32 v15, 10, v15\nv_cmp_eq_u32 vcc, 1, v10\nv_cndmask_b32_e64 v16, 0, 8, vcc")
    A("v_add3_u32 v15, v15, v16, v13\nv_lshl_add_u32 v16, v10, 11, v13")
    for i in range(12): A(f"v_mul_f32 v{ACC+i}, v{ACC+i}, v12")
    A(f"ds_write_b128 v14, v[{ACC}:{ACC+3}]")
    A(f"ds_write2_b32 v15, v{ACC+4}, v{ACC+5} offset0:0 offset1:4\nds_write2_b32 v15, v{ACC+6}, v{ACC+7} offset0:128 offset1:132")
    for r in range(4): A(f"ds_write_b32 v16, v{ACC+8+r} offset:{4096+512*r}")
    A("v_lshl_add_u32 v13, v2, 5, s23")
    A("v_sub_u32 v14, 63, v2\nv_lshl_add_u32 v14, v14, 4, s23")
    A("ds_read_b128 v[40:43], v13\nds_read_b128 v[44:47], v13 offset:16\nds_read_b32 v48, v13 offset:32")
    A("ds_read_b32 v49, v13 offset:2048\nds_read_b32 v50, v13 offset:2064\nds_read_b32 v51, v13 offset:2080")
    A("ds_read_b32 v52, v13 offset:4096\nds_read_b32 v53, v13 offset:4128\nds_read_b32 v54, v13 offset:6144\nds_read_b32 v55, v13 offset:6176")
    A("v_cmp_le_u32 vcc, 32, v2\nv_and_b32 v15, 1, v2\nv_cmp_eq_u32 s[82:83], 1, v15")
    A("v_mov_b32 v4, 0\nv_mov_b32 v5, 0\nv_lshl_add_u32 v6, v2, 3, s23")
    A("s_waitcnt lgkmcnt(0)")
    A(f"ds_write_b64 v6, v[4:5] offset:{KRO+4096}")
    A("s_mov_b64 exec, 0xf\nds_write_b64 v6, v[4:5]\ns_mov_b64 exec, -1")
    A("v_cndmask_b32 v41, v41, v40, vcc\nv_cndmask_b32 v43, v43, v44, vcc\nv_cndmask_b32 v45, v45, v44, vcc\nv_cndmask_b32 v47, v47, v48, vcc")
    A("v_cvt_pk_bf16_f32 v56, v47, v46\nv_cvt_pk_bf16_f32 v57, v45, v44\nv_cvt_pk_bf16_f32 v58, v43, v42\nv_cvt_pk_bf16_f32 v59, v41, v40")
    A(f"ds_write_b128 v14, v[56:59] offset:{KRO+3072}")
    A("v_cvt_pk_bf16_f32 v60, v51, v51\nv_cvt_pk_bf16_f32 v61, v50, v50\nv_cvt_pk_bf16_f32 v62, v50, v49\nv_cvt_pk_bf16_f32 v63, v49, v49")
    A(f"ds_write_b128 v14, v[60:63] offset:{KRO+2048}")
    for n,(c,nx) in enumerate(((52,53),(54,55))):
        o = 64+4*n
        A(f"v_cndmask_b32 v40, v{c}, v{nx}, s[82:83]")
        A(f"v_cvt_pk_bf16_f32 v{o}, v{nx}, v{nx}\nv_cvt_pk_bf16_f32 v{o+2}, v{c}, v{c}\nv_cvt_pk_bf16_f32 v{o+1}, v{nx}, v40\nv_mov_b32 v{o+3}, v{o+2}")
        A(f"ds_write_b128 v14, v[{o}:{o+3}] offset:{KRO+1024*(1-n)}")
    A.S("Ckgen")
    A.srd(28, pWS, 0x500000, HU)
    A("v_lshrrev_b32 v3, 2, v2\ns_mov_b32 s68, 81920\nv_mul_lo_u32 v3, v3, s68\nv_and_b32 v7, 3, v2\nv_lshl_add_u32 v3, v7, 8, v3")
    A("s_lshr_b32 s82, s22, 4\ns_add_u32 s82, s82, 40\ns_lshl_b32 s82, s82, 10\ns_and_b32 s83, s22, 15\ns_lshl_b32 s83, s83, 4\ns_add_u32 s82, s82, s83")
    A("v_lshl_add_u32 v7, v2, 4, s23")
    A("v_and_b32 v10, 1, v9\nv_add_u32 v11, v9, v10\nv_lshrrev_b32 v19, 4, v2\nv_lshl_add_u32 v11, v19, 3, v11\nv_lshlrev_b32 v11, 1, v11")
    A(f"v_xor_b32 v10, 1, v10\nv_mul_u32_u24 v10, {U1O}, v10\nv_add3_u32 v12, v11, v10, s23")
    for m in range(1, 4): A(f"v_add_u32 v{12+m}, {1024*m}, v12")
    A(f"v_lshlrev_b32 v16, 4, v19\nv_lshlrev_b32 v17, 5, v9\nv_sub_u32 v16, v16, v17\ns_add_u32 s83, s23, {KRO+480}\nv_add_u32 v16, s83, v16")
    A("v_lshl_add_u32 v18, v19, 3, v17\nv_add_u32 v18, s23, v18")
    A("v_and_b32 v20, 1, v19\nv_lshl_add_u32 v17, v20, 9, v17\nv_lshrrev_b32 v20, 1, v19\nv_lshl_add_u32 v17, v20, 4, v17")
    waitF1()
    A.S("Cseen")
    for i in range(4):
        A(f"s_add_u32 m0, s23, {32+1024*i}\ns_nop 0\nbuffer_load_dwordx4 v3, s[28:31], s82 offen sc1 lds")
        if i < 3: A(f"s_add_u32 s82, s82, {16*81920}")
    CA, CB, CACC = 24, 56, 152
    for i in range(32): A(f"v_mov_b32 v{CACC+i}, 0")
    A.srd(28, pWS, SZ_X, AT)
    A("s_mov_b32 s20, s21\ns_lshl_b32 s82, s22, 12\ns_mov_b32 s85, 0")
    A("s_waitcnt vmcnt(0)")
    for i in range(4): A(f"ds_read_b128 v[{24+8*i}:{27+8*i}], v7 offset:{1024*i}\nds_read_b32 v{28+8*i}, v7 offset:{1024*i+16}")
    A("ds_read_b128 v[56:59], v7 offset:4096\nds_read_b32 v60, v7 offset:4112")
    for i in range(5):
        A(f"s_waitcnt lgkmcnt({8-2*i})")
        r = 24+8*i; o = 64+4*i
        for q in range(4): A(f"v_alignbit_b32 v{o+q}, v{r+q+1}, v{r+q}, 16")
        if i == 4: A("s_mov_b64 exec, 3")
        A(f"ds_write_b128 v7, v[{o}:{o+3}] offset:{U1O+1024*i}")
    A("s_mov_b64 exec, -1")
    A.S("Cu1")
    def loads(s, rel):
        out = []
        for x in range(8):
            a = CA + 64*s + 4*x; b = CB + 64*s + 4*x
            o = 128*(x & 1) + 16*rel
            out.append(f"ds_read_b128 v[{b}:{b+3}], v16 offset:{512*(7-x)+64*rel}")
            out.append(f"ds_read2_b32 v[{a}:{a+1}], v{12+(x>>1)} offset0:{o} offset1:{o+1}")
            out.append(f"ds_read2_b32 v[{a+2}:{a+3}], v{12+(x>>1)} offset0:{o+2} offset1:{o+3}")
        return out
    for l in loads(0, 0): A(l)
    A(".p2align 3\nL_conv:")
    for s in range(2):
        A("s_waitcnt lgkmcnt(0)\ns_nop 0")
        nxt = loads(1-s, s+1)
        cnt = 0
        for kap in range(8):
            for mt in range(kap, 8):
                a = CA + 64*s + 4*kap; b = CB + 64*s + 4*(mt-kap); c = CACC + 4*mt
                A(f"v_mfma_f32_16x16x32_bf16 v[{c}:{c+3}], v[{a}:{a+3}], v[{b}:{b+3}], v[{c}:{c+3}]")
                if cnt < len(nxt): A(nxt[cnt])
                cnt += 1
    for r in (12, 13, 14, 15, 16): A(f"v_add_u32 v{r}, 128, v{r}")
    if not noconv: A("s_add_u32 s85, s85, 1\ns_cmp_lt_u32 s85, 4\ns_cbranch_scc1 L_conv")
    A("s_waitcnt lgkmcnt(0)")
    A.S("Cconv")
    for mt in range(8): A(f"ds_read_b64 v[{24+4*mt}:{25+4*mt}], v18 offset:{32+512*mt}")
    Y = 56
    for mt in range(8): A(f"v_cvt_pk_bf16_f32 v{Y+4*mt}, v{CACC+4*mt}, v{CACC+4*mt+1}\nv_cvt_pk_bf16_f32 v{Y+4*mt+2}, v{CACC+4*mt+2}, v{CACC+4*mt+3}")
    for i in range(16): A(f"v_and_b32 v{Y+2*i+1}, 0xffff0000, v{Y+2*i}\nv_lshlrev_b32 v{Y+2*i}, 16, v{Y+2*i}")
    A("s_waitcnt lgkmcnt(0)")
    for mt in range(8):
        t = 24+4*mt
        A(f"v_lshlrev_b32 v{t+2}, 16, v{t+1}\nv_and_b32 v{t+3}, 0xffff0000, v{t+1}\nv_and_b32 v{t+1}, 0xffff0000, v{t}\nv_lshlrev_b32 v{t}, 16, v{t}")
    for i in range(16): A(f"v_pk_mul_f32 v[{24+2*i}:{25+2*i}], v[{24+2*i}:{25+2*i}], s[20:21]")
    for i in range(16): A(f"v_cvt_pk_bf16_f32 v{24+2*i}, v{24+2*i}, v{25+2*i}")
    for i in range(16): A(f"v_and_b32 v{25+2*i}, 0xffff0000, v{24+2*i}\nv_lshlrev_b32 v{24+2*i}, 16, v{24+2*i}")
    for i in range(16): A(f"v_pk_add_f32 v[{24+2*i}:{25+2*i}], v[{24+2*i}:{25+2*i}], v[{Y+2*i}:{Y+2*i+1}]")
    for i in range(16): A(f"v_cvt_pk_bf16_f32 v{88+i}, v{24+2*i}, v{25+2*i}")
    for p in range(4): A(f"v_permlane16_swap_b32 v{88+4*p}, v{90+4*p}\nv_permlane16_swap_b32 v{89+4*p}, v{91+4*p}")
    for p in range(4): A(f"buffer_store_dwordx4 v[{88+4*p}:{91+4*p}], v17, s[28:31], s82 offen offset:{1024*p} sc1")
    A(f"s_lshl_b32 s82, s22, 7\ns_add_u32 s82, s82, {F3}\ns_waitcnt vmcnt(0)")
    A.setflag("s82", 4)
    A("s_cmp_eq_u32 s0, 1\ns_cbranch_scc1 L_chan_ret")
    A.st_end()
    A("L_end:\ns_endpgm\nL_codeend:")
    ref = open(f"cdna_kernels/{NAME}.s.ref").read().split("\n")
    head = [l for l in ref if l.startswith(";") and "@launch" not in l]
    out = head + [f"; @launch grid=(256,1,1) block=(448,1,1) lds={LDS_TOTAL}", '.amdgcn_target "amdgcn-amd-amdhsa--gfx950"\n.text']
    out += fix_hazards(A.L)
    out += ['.section .rodata,"a"', kdesc(KN, 232, 102)]
    return "\n".join(out) + "\n"

if __name__ == "__main__":
    path = sys.argv[1] if len(sys.argv) > 1 else f"cdna_kernels/{NAME}.s"
    kw = eval("dict(%s)" % sys.argv[2]) if len(sys.argv) > 2 else {}
    open(path, "w").write(build(**kw))
```

```python
import math, struct, sys
from asmlib import *
import numpy as np

NAME = "gated_mix__ssm_conv_s4d__mixer_token_mlp__prompt"
KN = NAME + "_kernel"
HU, GO, AT, GATE, STA, FL = 0, 0x500000, 0x780000, 0xA00000, 0xB00000, 0xC00000
F1, F2, F3, FLSZ = 0x1000, 0x10000, 0x20000, 0x40000
SZ_X = 2048*640*2
L2E = 1.4426950408889634
L2E_HI = float(np.float32(L2E)); L2E_LO = L2E - L2E_HI
I2P = 1/(2*math.pi)
I2P_HI = float(np.float32(I2P)); I2P_LO = I2P - I2P_HI
pU, pLA, pAI, pCR, pCI, pLDT, pDS = 36, 38, 40, 42, 44, 46, 48
pW1, pB1, pW2, pB2, pGW, pOUT, pDBG, pWS = 52, 54, 56, 58, 60, 62, 64, 66
sTAG, sX, sJ, sDT, sNT = 6, 8, 9, 10, 11
sLB = 7
sPH = 4
sBAR = 5
CREG = 131072; CSZ = 57*272
SYNC = CREG + 2*CSZ + 96
LDS_TOTAL = 163840
STG = 24576
U1O, KRO = 4160, 8320
WF0, ACT0, ACC0 = 4, 36, 116
vW0, vW1, vA0, vA1, vT = 196, 197, 198, 199, 200
t0, t1 = 204, 205
E = 206
vSY = 230
SPIN = 1 << 18

class K:
    def __init__(self, stamp): self.L = []; self.stamp = stamp; self.nl = 0
    def __call__(self, s): self.L.append(s)
    def lab(self, p): self.nl += 1; return f"L{p}{self.nl}"
    def srd(self, d, base, size, off=None):
        if off is None:
            self(f"s_mov_b32 s{d}, s{base}\ns_and_b32 s{d+1}, s{base+1}, 0xffff")
        else:
            self(f"s_add_u32 s{d}, s{base}, {off}\ns_addc_u32 s{d+1}, s{base+1}, 0\ns_and_b32 s{d+1}, s{d+1}, 0xffff")
        self(f"s_mov_b32 s{d+2}, {size}\ns_mov_b32 s{d+3}, 0x20000")
    def bfr(self, dst, src):
        self(f"v_cvt_pk_bf16_f32 v{dst}, v{src}, v{src}\nv_and_b32 v{dst}, 0xffff0000, v{dst}")
    def exp_precise(self, dst, x, t, r, sL, sLlo, sLn2):
        self(f"v_mul_f32 v{t}, s{sL}, v{x}\nv_fma_f32 v{r}, v{x}, s{sL}, -v{t}\nv_fma_f32 v{r}, v{x}, s{sLlo}, v{r}")
        self(f"v_exp_f32 v{t}, v{t}\nv_mul_f32 v{r}, s{sLn2}, v{r}\nv_fma_f32 v{dst}, v{t}, v{r}, v{t}")
    def st(self, i):
        if self.stamp: self(f"{'s_memtime' if self.stamp == 2 else 's_memrealtime'} s[{90+2*min(i,5)}:{91+2*min(i,5)}]")
    def S(self, name):
        if self.stamp:
            for i, n in enumerate(self.names):
                if name in n.split('/'): self.st(1 + i)
    def S0(self, name):
        if self.stamp and any(name in n.split('/') for n in self.names):
            l = self.lab("z")
            self(f"s_cmp_lg_u32 s{sPH}, 0\ns_cbranch_scc1 {l}"); self.S(name); self(f"{l}:")
    def st_end(self):
        if not self.stamp: return
        A = self
        A("s_waitcnt vmcnt(0)"); A.st(7); A("s_waitcnt lgkmcnt(0)")
        A(f"s_lshl_b32 s68, s2, 3\ns_add_u32 s68, s68, s3\ns_lshl_b32 s68, s68, 5\ns_add_u32 s68, s68, {STA}")
        A("s_mov_b64 exec, 1")
        for i in range(8): A(f"v_mov_b32 v{4+i}, " + (f"s{90+2*i}" if i < 5 else "s100" if i == 7 else "0"))
        A(f"v_mov_b32 v3, s68\nglobal_store_dwordx4 v3, v[4:7], s[{pWS}:{pWS+1}]\nglobal_store_dwordx4 v3, v[8:11], s[{pWS}:{pWS+1}] offset:16")
    def arrive(self, word, tmp):
        self(f"s_mov_b64 exec, 1\nv_mov_b32 v{tmp}, 1\nds_add_u32 v{vSY}, v{tmp} offset:{4*word}\ns_mov_b64 exec, -1")
    def waitge(self, word, target, tmp, sleep=0):
        l = self.lab("w"); e = self.lab("e")
        self(f"s_mov_b32 s69, 0\n{l}:\nds_read_b32 v{tmp}, v{vSY} offset:{4*word}\ns_add_u32 s69, s69, 1\ns_waitcnt lgkmcnt(0)\nv_readfirstlane_b32 s68, v{tmp}")
        self(f"s_cmp_ge_u32 s68, {target}\ns_cbranch_scc1 {e}")
        if sleep: self(f"s_sleep {sleep}")
        self(f"s_cmp_lt_u32 s69, {SPIN}\ns_cbranch_scc1 {l}\n{e}:")
    def gbar(self, tmp):
        self(f"s_add_u32 s{sBAR}, s{sBAR}, 4")
        self.arrive(0, tmp); self.waitge(0, f"s{sBAR}", tmp)
    def poll(self, loads, regs_, sleep=0):
        l = self.lab("p"); e = self.lab("q")
        self(f"s_mov_b32 s69, 0\n{l}:")
        for (va, so), r in zip(loads, regs_): self(f"buffer_load_dword v{r}, v{va}, s[24:27], {so} offen sc1")
        self("s_add_u32 s69, s69, 1\ns_waitcnt vmcnt(0)")
        for r in regs_: self(f"v_xor_b32 v{r}, s{sTAG}, v{r}")
        for r in regs_[1:]: self(f"v_or_b32 v{regs_[0]}, v{regs_[0]}, v{r}")
        self(f"v_cmp_ne_u32 vcc, 0, v{regs_[0]}\ns_cbranch_vccz {e}\ns_sleep {sleep}\ns_cmp_lt_u32 s69, {SPIN>>4}\ns_cbranch_scc1 {l}\n{e}:")
    def pollm(self, loads, regs_, masks, sleep=0):
        l = self.lab("p"); e = self.lab("q")
        for m in masks: self(f"s_mov_b64 s[{m}:{m+1}], -1")
        self(f"s_mov_b32 s69, 0\n{l}:")
        for (va, so), r, m in zip(loads, regs_, masks):
            k = self.lab("k")
            self(f"s_mov_b64 exec, s[{m}:{m+1}]\ns_cbranch_execz {k}\nbuffer_load_dword v{r}, v{va}, s[24:27], {so} offen sc1\n{k}:")
        self("s_add_u32 s69, s69, 1\ns_waitcnt vmcnt(0)")
        for r, m in zip(regs_, masks):
            self(f"s_mov_b64 exec, s[{m}:{m+1}]\nv_cmp_ne_u32 s[{m}:{m+1}], s{sTAG}, v{r}")
        self("s_mov_b64 exec, -1")
        self(f"s_or_b64 vcc, s[{masks[0]}:{masks[0]+1}], s[{masks[1]}:{masks[1]+1}]")
        for m in masks[2:]: self(f"s_or_b64 vcc, vcc, s[{m}:{m+1}]")
        self(f"s_cbranch_scc0 {e}\ns_sleep {sleep}\ns_cmp_lt_u32 s69, {SPIN>>4}\ns_cbranch_scc1 {l}\n{e}:")
    def poll4(self, va, so, r, sleep=0):
        l = self.lab("p"); e = self.lab("q")
        self(f"s_mov_b32 s69, 0\n{l}:")
        self(f"buffer_load_dwordx4 v[{r}:{r+3}], v{va}, s[24:27], {so} offen sc1")
        self("s_add_u32 s69, s69, 1\ns_waitcnt vmcnt(0)")
        for i in range(4): self(f"v_xor_b32 v{r+i}, s{sTAG}, v{r+i}")
        self(f"v_or3_b32 v{r}, v{r}, v{r+1}, v{r+2}\nv_or_b32 v{r}, v{r}, v{r+3}")
        self(f"v_cmp_ne_u32 vcc, 0, v{r}\ns_and_b64 exec, exec, vcc\ns_cbranch_execz {e}\ns_sleep {sleep}\ns_cmp_lt_u32 s69, {SPIN>>4}\ns_cbranch_scc1 {l}\n{e}:\ns_mov_b64 exec, -1")
    def setflag(self, soff, tmp):
        self(f"s_mov_b64 exec, 1\nv_mov_b32 v{tmp}, s{sTAG}\nv_mov_b32 v{tmp+1}, 0\nbuffer_store_dword v{tmp}, v{tmp+1}, s[24:27], {soff} offen sc1\ns_mov_b64 exec, -1")

sA, sAstep, sAend, sAsz = 70, 71, 72, 73
sW, sWstep, sWend, sW8 = 74, 75, 76, 77
sM, sIt, sN = 78, 79, 80
DNT = ""
sDA, sDW = 20, 86
def dma_step(A, slot_imm=None, adv=None):
    for i in range(4):
        A(f"s_add_u32 m0, s{sM}, {(slot_imm or 0) + i*1024}")
        if i == 0: A("s_nop 0")
        elif i == 1: A(f"s_add_u32 s81, s{sW}, s{sW8}")
        else: A(f"s_add_u32 s81, s81, s{sW8}")
        A(f"buffer_load_dwordx4 v{vW1 if i%2 else vW0}, s[12:15], s{81 if i else sW} offen {DNT} lds")
    A(f"s_add_u32 s{sW}, s{sW}, s{adv or sWstep}")
def w_setup(A, ptr, stride, ktot, loader=False):
    A.srd(12, ptr, 7077888)
    A(f"v_lshrrev_b32 v{t0}, 3, v2\nv_mul_u32_u24 v{vW0}, {stride}, v{t0}\nv_and_b32 v{t1}, 7, v2")
    A(f"v_and_b32 v{t0}, 2, v{t0}\nv_xor_b32 v{t1}, v{t1}, v{t0}")
    A(f"v_lshl_add_u32 v{vW0}, v{t1}, 4, v{vW0}\nv_xor_b32 v{vW1}, 64, v{vW0}")
    if loader: A(f"s_lshl_b32 s{sW}, s{sNT}, 7")
    else: A(f"s_add_u32 s{sW}, s3, 32\ns_mul_i32 s{sW}, s{sW}, {32*stride}\ns_lshl_b32 s81, s{sNT}, 7\ns_add_u32 s{sW}, s{sW}, s81")
    A(f"s_mov_b32 s{sWstep}, {128*stride}\ns_mov_b32 s{sWend}, {ktot*32*stride}\ns_mov_b32 s{sW8}, {8*stride}")

def build(stamp=False, touch1=True, touch2=True, codetouch=True, prio=True, npre=4, st2=False, noconv=False, actmod='sc1', acttouch=False, w2l2=True, fastr=False, lateack=True, maskpoll=True, nt0=16, fdepth=2, lprio=0, gate2=6, wflag=False, allw2=False, b2when='ack', split1=False, cprio=0, gprio=0, split2=True, early2=False, promote2=False, pnt='', t2nt='', promote=True, xnt='nt', tnt='nt', dnt='', fnt='', latepoll=True, psleep=1, tlb=False, posttouch=True, yieldln=True, yieldx=False, w2depth=8, t2early=True, dbg='', names='seen1 loop1 flag2 seen2', LA=3, SH=4, gwait=0, cwait=0, pat=(2,1,1,1), actpos='grp'):
    global DNT
    DNT = dnt
    A = K(stamp); A.names = names.split()
    A(f".globl {KN}\n.p2align 8\n.type {KN},@function\n{KN}:")
    A("s_cmp_ge_u32 s2, 256\ns_cbranch_scc1 L_end")
    A.st(0)
    A("s_load_dwordx16 s[36:51], s[0:1], 0\ns_load_dwordx16 s[52:67], s[0:1], 64")
    A("v_lshrrev_b32 v1, 6, v0\nv_and_b32 v2, 63, v0")
    A(f"v_mov_b32 v{vSY}, {SYNC}\nv_mov_b32 v4, 0\nv_mov_b32 v5, 0")
    A("v_readfirstlane_b32 s3, v1")
    for i in range(5): A(f"ds_write_b64 v{vSY}, v[4:5] offset:{8*i}")
    A(f"s_and_b32 s{sX}, s2, 7\ns_lshr_b32 s{sJ}, s2, 3\ns_mov_b32 s{sBAR}, 0")
    A(f"s_and_b32 s{sDT}, s{sJ}, 7")
    A(f"s_cmp_lt_u32 s{sX}, 3\ns_cselect_b32 s83, 32, 24")
    A(f"s_cmp_lt_u32 s{sJ}, s83\ns_cselect_b32 s{sPH}, 0, 1")
    A(f"s_mul_i32 s{sNT}, s{sX}, 3\ns_min_u32 s68, s{sX}, 3\ns_add_u32 s{sNT}, s{sNT}, s68\ns_lshr_b32 s68, s{sJ}, 3\ns_add_u32 s{sNT}, s{sNT}, s68")
    A("s_cmp_eq_u32 s3, 6\ns_cbranch_scc1 L_lwave")
    A("s_cmp_ge_u32 s3, 4\ns_cbranch_scc1 L_cwave")
    if prio: A("s_setprio 1")
    A(f"s_lshl_b32 s{sLB}, s3, 15")
    A(f"s_lshl_b32 s84, s{sX}, 5\ns_add_u32 s84, s84, s{sJ}")
    A("s_lshl_b32 s85, s84, 3\ns_lshl_b32 s68, s3, 1\ns_add_u32 s85, s85, s68")
    A("s_mul_i32 s68, s85, 1280")
    A("v_lshlrev_b32 v14, 4, v2\nv_lshlrev_b32 v15, 2, v2\nv_add_u32 v15, 1024, v15")
    A("s_waitcnt lgkmcnt(0)")
    A.srd(28, pU, SZ_X)
    A(f"buffer_load_dwordx4 v[4:7], v14, s[28:31], s68 offen {xnt}\nbuffer_load_dword v12, v15, s[28:31], s68 offen {xnt}")
    A(f"buffer_load_dwordx4 v[8:11], v14, s[28:31], s68 offen offset:1280 {xnt}\nbuffer_load_dword v13, v15, s[28:31], s68 offen offset:1280 {xnt}")
    A(f"global_load_dwordx4 v[16:19], v14, s[{pGW}:{pGW+1}]\nglobal_load_dword v20, v15, s[{pGW}:{pGW+1}]")
    A.srd(24, pWS, FLSZ, FL)
    A("v_mov_b32 v21, 0\nbuffer_load_dword v21, v21, s[24:27], 0 offen sc1")
    A("s_barrier")
    w_setup(A, pW1, 3456, 64)
    A(f"s_add_u32 s{sM}, s{sLB}, {0x4000 if SH == 4 else 0}")
    A("s_waitcnt vmcnt(0)")
    A.S("x")
    X = (24, 34); GW = 44
    src = ((4,5,6,7,12), (8,9,10,11,13))
    for q in range(2):
        for i in range(5): A(f"v_lshlrev_b32 v{X[q]+2*i}, 16, v{src[q][i]}\nv_and_b32 v{X[q]+2*i+1}, 0xffff0000, v{src[q][i]}")
    for i, r in enumerate((16,17,18,19,20)): A(f"v_lshlrev_b32 v{GW+2*i}, 16, v{r}\nv_and_b32 v{GW+2*i+1}, 0xffff0000, v{r}")
    A(f"v_readfirstlane_b32 s{sTAG}, v21")
    A(f"v_readlane_b32 s68, v{X[0]}, 0\nv_readlane_b32 s70, v{X[1]}, 0")
    A(f"s_add_u32 s{sTAG}, s{sTAG}, 1\ns_mov_b32 s69, s68\ns_mov_b32 s71, s70")
    A(f"s_and_b32 s72, s3, 1\ns_lshl_b32 s72, s72, 7\ns_add_u32 s72, s72, s{sLB}\ns_add_u32 s72, s72, {STG}")
    A("v_add_u32 v22, s72, v14\nv_add_u32 v23, s72, v15")
    for q in range(2):
        D = 54 + 20*q; T = 64 + 20*q; c = 68 + 2*q
        for i in range(5): A(f"v_pk_add_f32 v[{D+2*i}:{D+2*i+1}], v[{X[q]+2*i}:{X[q]+2*i+1}], s[{c}:{c+1}] neg_lo:[0,1] neg_hi:[0,1]")
        for i in range(5): A(f"v_pk_mul_f32 v[{T+2*i}:{T+2*i+1}], v[{X[q]+2*i}:{X[q]+2*i+1}], v[{GW+2*i}:{GW+2*i+1}]")
    for q in range(2):
        D = 54 + 20*q; T = 64 + 20*q; S = 94 + 6*q
        A(f"v_pk_mul_f32 v[{S+2}:{S+3}], v[{D}:{D+1}], v[{D}:{D+1}]\nv_pk_add_f32 v[{S}:{S+1}], v[{D}:{D+1}], v[{D+2}:{D+3}]")
        for i in range(5): A(f"v_cvt_pk_bf16_f32 v{T+2*i}, v{T+2*i}, v{T+2*i+1}")
        for i in range(1, 5):
            A(f"v_pk_fma_f32 v[{S+2}:{S+3}], v[{D+2*i}:{D+2*i+1}], v[{D+2*i}:{D+2*i+1}], v[{S+2}:{S+3}]")
            if i >= 2: A(f"v_pk_add_f32 v[{S}:{S+1}], v[{S}:{S+1}], v[{D+2*i}:{D+2*i+1}]")
        for i in range(5): A(f"v_and_b32 v{T+2*i+1}, 0xffff0000, v{T+2*i}\nv_lshlrev_b32 v{T+2*i}, 16, v{T+2*i}")
        A(f"v_pk_add_f32 v[{S+4}:{S+5}], v[{T}:{T+1}], v[{T+2}:{T+3}]\nv_pk_add_f32 v[{T+4}:{T+5}], v[{T+4}:{T+5}], v[{T+6}:{T+7}]")
        A(f"v_pk_add_f32 v[{S+4}:{S+5}], v[{S+4}:{S+5}], v[{T+8}:{T+9}]\nv_pk_add_f32 v[{S+4}:{S+5}], v[{S+4}:{S+5}], v[{T+4}:{T+5}]")
    for q in range(2):
        for n in range(3): A(f"v_add_f32 v{106+2*n+q}, v{94+6*q+2*n}, v{95+6*q+2*n}")
    for n in range(3): A(f"v_permlane32_swap_b32 v{106+2*n}, v{107+2*n}")
    for n in range(3): A(f"v_add_f32 v{106+2*n}, v{106+2*n}, v{107+2*n}")
    for ctl in ("quad_perm:[1,0,3,2]", "quad_perm:[2,3,0,1]", "row_half_mirror", "row_mirror"):
        for n in range(3): A(f"v_add_f32_dpp v{106+2*n}, v{106+2*n}, v{106+2*n} {ctl} row_mask:0xf bank_mask:0xf")
    for n in range(3): A(f"v_mov_b32 v{107+2*n}, v{106+2*n}")
    A("v_mov_b32 v112, s68\ns_mov_b32 exec_lo, 0\nv_mov_b32 v112, s70\ns_mov_b32 exec_lo, -1")
    for n in range(3): A(f"v_permlane16_swap_b32 v{106+2*n}, v{107+2*n}")
    for n in range(3): A(f"v_add_f32 v{106+2*n}, v{106+2*n}, v{107+2*n}")
    inv = f32bits(1/640)
    A(f"v_mul_f32 v106, {inv}, v106\nv_mul_f32 v108, {inv}, v108")
    A("v_fma_f32 v108, -v106, v106, v108\nv_add_f32 v106, v106, v112\nv_max_f32 v108, 0, v108")
    A.bfr(110, 110); A.bfr(108, 108); A.bfr(106, 106)
    A(f"v_add_f32 v108, {f32bits(1e-5)}, v108\nv_mul_f32 v110, {f32bits(-L2E)}, v110")
    A.bfr(108, 108)
    A("v_exp_f32 v110, v110\nv_sqrt_f32 v108, v108\nv_readlane_b32 s68, v106, 0\nv_readlane_b32 s70, v106, 32")
    A("v_add_f32 v110, 1.0, v110")
    A.bfr(108, 108)
    A("v_rcp_f32 v110, v110\nv_rcp_f32 v108, v108\ns_mov_b32 s69, s68\ns_mov_b32 s71, s70")
    for q in range(2):
        D = 54 + 20*q; c = 68 + 2*q
        for i in range(5): A(f"v_pk_add_f32 v[{D+2*i}:{D+2*i+1}], v[{X[q]+2*i}:{X[q]+2*i+1}], s[{c}:{c+1}] neg_lo:[0,1] neg_hi:[0,1]")
    A("v_readlane_b32 s68, v108, 0\nv_readlane_b32 s70, v108, 32")
    A.bfr(112, 110)
    for q in range(2):
        D = 54 + 20*q
        for i in range(5): A(f"v_cvt_pk_bf16_f32 v{D+2*i}, v{D+2*i}, v{D+2*i+1}")
    A("s_mov_b32 s69, s68\ns_mov_b32 s71, s70\nv_sub_f32 v113, 1.0, v112")
    for q in range(2):
        D = 54 + 20*q
        for i in range(5): A(f"v_and_b32 v{D+2*i+1}, 0xffff0000, v{D+2*i}\nv_lshlrev_b32 v{D+2*i}, 16, v{D+2*i}")
    A.bfr(113, 113)
    for q in range(2):
        D = 54 + 20*q; c = 68 + 2*q
        for i in range(5): A(f"v_pk_mul_f32 v[{D+2*i}:{D+2*i+1}], v[{D+2*i}:{D+2*i+1}], s[{c}:{c+1}]")
    for q in range(2):
        D = 54 + 20*q; H = 24 + 6*q
        for i in range(5): A(f"v_cvt_pk_bf16_f32 v{H+i}, v{D+2*i}, v{D+2*i+1}")
        A(f"ds_write_b128 v22, v[{H}:{H+3}] offset:{1344*q}\nds_write_b32 v23, v{H+4} offset:{1344*q}")
    A.S("ln")
    A.arrive(0, 36)
    A("v_lshrrev_b32 v37, 4, v2\nv_bfe_u32 v38, v2, 2, 2\nv_and_b32 v39, 3, v2\nv_and_b32 v40, 15, v2")
    A(f"v_lshrrev_b32 v41, 1, v38\nv_mul_u32_u24 v41, {32768+128}, v41\nv_and_b32 v42, 1, v38\nv_mul_u32_u24 v42, 1344, v42")
    A(f"s_lshl_b32 s72, s3, 7\ns_add_u32 s72, s72, {STG}\nv_add3_u32 v41, v41, v42, s72\nv_lshl_add_u32 v41, v37, 5, v41\nv_lshl_add_u32 v41, v39, 3, v41")
    A("v_add_u32 v42, 0x10000, v41")
    A("s_lshl_b32 s72, s3, 12\nv_lshlrev_b32 v45, 10, v37\nv_lshl_add_u32 v45, v40, 4, v45\nv_add_u32 v45, s72, v45")
    A("s_lshr_b32 s72, s84, 2\ns_mul_i32 s72, s72, 40960\ns_and_b32 s73, s84, 3\ns_lshl_b32 s73, s73, 8\ns_add_u32 s72, s72, s73")
    A.srd(20, pWS, 0x500000, HU)
    A.srd(32, pWS, 2048*8, GATE)
    A("v_lshrrev_b32 v46, 5, v2\nv_lshlrev_b32 v46, 3, v46\ns_lshl_b32 s73, s85, 3")
    A("s_mov_b32 exec_lo, 1\ns_mov_b32 exec_hi, 1\nbuffer_store_dwordx2 v[112:113], v46, s[32:35], s73 offen sc1\ns_mov_b64 exec, -1")
    A(f"s_add_u32 s{sBAR}, s{sBAR}, 4")
    A.waitge(0, f"s{sBAR}", 36)
    for i in range(3):
        A(f"ds_read_b64_tr_b16 v[{48+4*i}:{49+4*i}], v41 offset:{i*512}\nds_read_b64_tr_b16 v[{50+4*i}:{51+4*i}], v42 offset:{i*512}")
    for i in range(3):
        if i == 2: A("s_cmp_ge_u32 s3, 2\ns_cbranch_scc1 L_no3")
        A(f"s_waitcnt lgkmcnt({4-2*i})\nbuffer_store_dwordx4 v[{48+4*i}:{51+4*i}], v45, s[20:23], s72 offen sc1")
        if i < 2: A("s_add_u32 s72, s72, 16384")
    A("L_no3:\ns_waitcnt lgkmcnt(0)")
    A.S("st")
    A.arrive(4, 36)
    A("s_waitcnt vmcnt(0)")
    A.S("ack1")
    A.gbar(36)
    A.S("bar1")
    A("s_cmp_lg_u32 s3, 0\ns_cbranch_scc1 L_noflag1")
    A.waitge(8, 1, 36)
    A(f"s_lshr_b32 s72, s84, 2\ns_lshl_b32 s72, s72, 7\ns_and_b32 s73, s84, 3\ns_lshl_b32 s73, s73, 2\ns_add_u32 s72, s72, s73\ns_add_u32 s72, s72, {F1}")
    A.setflag("s72", 36)
    A("L_noflag1:")
    A(f"v_lshlrev_b32 v{vA0}, 4, v2\nv_add_u32 v{vA1}, 4096, v{vA0}\nv_mov_b32 v{E+23}, 0")
    A(f"v_lshrrev_b32 v{t0}, 4, v2\nv_bfe_u32 v{t1}, v2, 2, 2")
    A(f"v_lshlrev_b32 v{vT}, 10, v{t0}\nv_lshl_add_u32 v{vT}, v{t1}, 7, v{vT}")
    A(f"v_and_b32 v{t0}, 1, v{t0}\nv_lshlrev_b32 v{t0}, 1, v{t0}\nv_lshrrev_b32 v{t1}, 1, v{t1}\nv_or_b32 v{t0}, v{t0}, v{t1}")
    A(f"v_lshl_add_u32 v{vT}, v{t0}, 5, v{vT}\nv_and_b32 v{t1}, 3, v2\nv_lshl_add_u32 v{vT}, v{t1}, 3, v{vT}\nv_add_u32 v{t0}, s{sLB}, v{vT}")
    for a in range(4):
        A(f"s_add_u32 s68, s3, {a}\ns_and_b32 s68, s68, 3\ns_lshl_b32 s68, s68, 5\nv_xor_b32 v{vT+a}, s68, v{t0}")
    A(f"s_mul_i32 s68, s{sDT}, 5120")
    A.srd(16, pWS, 0x500000, "s68")
    A(f"s_cmp_lg_u32 s{sPH}, 0\ns_cbranch_scc1 L_freecu")
    A(f"v_lshrrev_b32 v{E}, 4, v2\nv_lshlrev_b32 v{E}, 3, v{E}\ns_lshl_b32 s68, s3, 5\ns_lshl_b32 s69, s{sNT}, 7\ns_add_u32 s68, s68, s69\nv_add_u32 v{E}, s68, v{E}")
    A(f"global_load_dwordx2 v[{E}:{E+1}], v{E}, s[{pB1}:{pB1+1}]")
    A(f"s_mul_i32 s{sA}, s3, 40960\ns_mov_b32 s{sAstep}, {4*40960}\ns_mov_b32 s{sAend}, {64*40960}\ns_mov_b32 s{sAsz}, 0x500000\ns_mov_b32 s{sN}, 1")
    def act_touch_addr(stride):
        A(f"s_lshr_b32 s68, s{sJ}, 2\ns_lshl_b32 s68, s68, 6\nv_add_u32 v44, s68, v2\ns_mov_b32 s68, {stride}")
        for r in range(5):
            A(f"v_mul_u32_u24 v45, 1639, v44\nv_lshrrev_b32 v45, 16, v45\nv_mul_u32_u24 v46, 40, v45\nv_sub_u32 v46, v44, v46")
            A(f"v_mul_lo_u32 v45, v45, s68\nv_lshl_add_u32 v{48+r}, v46, 7, v45\nv_add_u32 v44, 512, v44")
    def act_touch():
        for r in range(5): A(f"buffer_load_dword v231, v{48+r}, s[16:19], 0 offen sc1")
    def waitF1(inchan=False):
        l1 = A.lab("f"); l2 = A.lab("f")
        A(f"s_cmp_lg_u32 s3, 0\ns_cbranch_scc1 {l1}")
        A(f"v_lshlrev_b32 v36, 7, v2\ns_mov_b32 s51, {F1}")
        if acttouch: act_touch_addr(81920)
        if latepoll and not inchan: A.waitge(6, 1, 40, sleep=1)
        A.poll4(36, "s51", 40, sleep=psleep)
        if acttouch: act_touch()
        A(f"v_mov_b32 v36, s{sTAG}\nds_write_b32 v{vSY}, v36 offset:12")
        A.arrive(1, 36)
        A(f"s_cmp_lg_u32 s2, 0\ns_cbranch_scc1 {l2}")
        A.setflag("0", 36)
        A(f"s_branch {l2}\n{l1}:")
        A.waitge(1, 1, 36, sleep=1)
        A(f"ds_read_b32 v36, v{vSY} offset:12\ns_waitcnt lgkmcnt(0)\nv_readfirstlane_b32 s{sTAG}, v36")
        A(f"{l2}:")
    A(f"s_mul_i32 s68, s{sDT}, 5120\ns_add_u32 s68, s68, {GO}")
    A.srd(28, pWS, 54*40960, "s68")
    A(f"s_lshl_b32 s84, s{sNT}, 1\ns_lshr_b32 s69, s3, 1\ns_add_u32 s84, s84, s69\ns_mul_i32 s84, s84, 40960\ns_and_b32 s69, s3, 1\ns_lshl_b32 s69, s69, 9\ns_add_u32 s84, s84, s69\ns_add_u32 s85, s84, 4096")
    A(f"v_bfe_u32 v{E+2}, v2, 4, 1\nv_lshlrev_b32 v{E+2}, 10, v{E+2}\nv_lshrrev_b32 v11, 5, v2\nv_lshl_add_u32 v{E+2}, v11, 8, v{E+2}\nv_and_b32 v11, 15, v2\nv_lshl_add_u32 v{E+2}, v11, 4, v{E+2}")
    A(f"s_lshl_b32 s50, s{sDT}, 5\ns_add_u32 s50, s50, s{sNT}\ns_lshl_b32 s50, s50, 7\ns_lshl_b32 s69, s3, 2\ns_add_u32 s50, s50, s69\ns_add_u32 s50, s50, {F2}")
    A("L_waitf1:")
    for i in range(80): A(f"v_mov_b32 v{ACC0+i}, 0")
    waitF1()
    A.S("poll1")
    A.waitge(6, 1, 36)
    A.S("seen1")
    A(f"s_cmp_lg_u32 s{sPH}, 0\ns_cbranch_scc1 L_chan_ret")
    A("L_gemm:")
    A(f"s_mov_b32 s87, 0\ns_lshl_b32 s88, s{sW8}, 1\ns_sub_u32 s89, s{sWstep}, s88\ns_xor_b32 s89, s89, s88")
    if 'a' in dbg: A(f"s_mov_b32 s{sAsz}, 0")
    if 's' in dbg: A(f"s_mov_b32 s{sAstep}, 0")
    if 'w' in dbg: A(f"s_mov_b32 s{sWend}, 0")
    def act_addr():
        A(f"s_cmp_lt_u32 s{sA}, s{sAend}\ns_cselect_b32 s18, s{sAsz}, 0")
    def act(stage, db):
        r = ACT0 + stage*20 + db*4
        if db < 4: A(f"buffer_load_dwordx4 v[{r}:{r+3}], v{vA0}, s[16:19], s{sA} offen offset:{db*1024} {actmod}")
        else: A(f"buffer_load_dwordx4 v[{r}:{r+3}], v{vA1}, s[16:19], s{sA} offen {actmod}\ns_add_u32 s{sA}, s{sA}, s{sAstep}")
    def trr(buf, slot):
        for a in range(4):
            r = WF0 + buf*16 + a*4
            A(f"ds_read_b64_tr_b16 v[{r}:{r+1}], v{vT+a} offset:{slot*4096}\nds_read_b64_tr_b16 v[{r+2}:{r+3}], v{vT+a} offset:{slot*4096+512}")
    for st in range(LA):
        act_addr()
        for db in range(5): act(st, db)
    A(f"s_mov_b32 s{sIt}, s{sPH}")
    trr(0, 0)
    def mfmas(u, db):
        b = ACT0 + u*20 + db*4
        for a in range(4):
            c = ACC0 + (a*5+db)*4; w = WF0 + (u%2)*16 + a*4
            if 'm' not in dbg or a == 0: A(f"v_mfma_f32_16x16x32_bf16 v[{c}:{c+3}], v[{w}:{w+3}], v[{b}:{b+3}], v[{c}:{c+3}]")
    A(".p2align 3\nL_loop:")
    for u in range(4):
        if u == 3:
            k = A.lab("c")
            A(f"s_cmp_eq_u32 s{sN}, 0\ns_cbranch_scc1 {k}")
            A.waitge(9, f"s{sN}", t0)
            A(f"s_mov_b32 s{sN}, 0\n{k}:")
        A(f"s_waitcnt vmcnt({5*(LA-1)})")
        if u == 3:
            for a in range(4): A(f"v_xor_b32 v{vT+a}, 0x4000, v{vT+a}")
        trr((u+1) % 2, (u+1) % 4)
        A("s_waitcnt lgkmcnt(8)")
        def half():
            sk = A.lab("s")
            A(f"s_cmp_lt_u32 s{sW}, s{sWend}\ns_cbranch_scc0 {sk}")
            A(f"s_add_u32 m0, s{sLB}, s87\ns_add_u32 s81, s{sW}, s{sW8}\nbuffer_load_dwordx4 v{vW0}, s[12:15], s{sW} offen {DNT} lds")
            A(f"s_add_u32 m0, m0, 1024\ns_add_u32 s{sW}, s{sW}, s88\nbuffer_load_dwordx4 v{vW1}, s[12:15], s81 offen {DNT} lds")
            A(f"s_xor_b32 s88, s88, s89\ns_add_u32 s87, s87, 2048\n{sk}:")
        for _ in range(pat[u]): half()
        act_addr()
        if actpos == 'top':
            for db in range(5): act((u+LA) % 4, db)
        for db in range(5):
            mfmas(u, db)
            if actpos == 'grp': act((u+LA) % 4, db)
        for ph, n in ((0, 16), (1, 14)):
            last = n - LA - 1
            if last % 4 == u and u != 3: A(f"s_cmp_eq_u32 s{sIt}, {last - u + ph}\ns_cbranch_scc1 L_drain{ph}")
    if stamp:
        k = A.lab("r"); A(f"s_cmp_lg_u32 s{sIt}, 0\ns_cbranch_scc1 {k}"); A.S("trip1"); A(f"{k}:")
        k = A.lab("r"); A(f"s_cmp_lg_u32 s{sIt}, 4\ns_cbranch_scc1 {k}"); A.S("trip2"); A(f"{k}:")
    for ph, n in ((0, 16), (1, 14)):
        last = n - LA - 1
        if last % 4 == 3: A(f"s_cmp_eq_u32 s{sIt}, {last - 3 + ph}\ns_cbranch_scc1 L_drain{ph}")
    A(f"s_add_u32 s{sIt}, s{sIt}, 4\ns_branch L_loop")
    def xw(db):
        for a in range(1, 4):
            c = ACC0 + (a*5+db)*4
            A(f"ds_write_b128 v{t0}, v[{c}:{c+3}] offset:{16384+((a-1)*5+db)*1024}")
    def mf(u, a, db):
        b = ACT0 + u*20 + db*4; c = ACC0 + (a*5+db)*4; w = WF0 + (u%2)*16 + a*4
        A(f"v_mfma_f32_16x16x32_bf16 v[{c}:{c+3}], v[{w}:{w+3}], v[{b}:{b+3}], v[{c}:{c+3}]")
    def drain(seq, ph):
        for n, u in enumerate(seq[:-1]):
            if ph == 1 and n == len(seq)-2:
                A.S("loop2")
                A.waitge(7, 2, t0, sleep=1)
                A.S("f3")
                A(f"s_mul_i32 s68, s{sDT}, {80*4096}\ns_lshl_b32 s85, s84, 1\ns_add_u32 s68, s68, s85")
                for db in range(5):
                    A(f"buffer_load_dwordx2 v[{E+10+2*db}:{E+11+2*db}], v{E+23}, s[28:31], s68 offen sc1")
                    if db < 4: A("s_add_u32 s68, s68, 65536")
            A(f"s_waitcnt vmcnt({5*(LA-1-n)})")
            if u == 3:
                for a in range(4): A(f"v_xor_b32 v{vT+a}, 0x4000, v{vT+a}")
            trr((u+1) % 2, (u+1) % 4)
            A("s_waitcnt lgkmcnt(8)")
            for db in range(5): mfmas(u, db)
        u = seq[-1]
        A(f"v_add_u32 v{t0}, s{sLB}, v{vA0}")
        A("s_waitcnt vmcnt(0) lgkmcnt(0)" if ph == 0 else "s_waitcnt lgkmcnt(0)")
        for db in range(5):
            for a in (1, 2, 3): mf(u, a, db)
            if db >= 2: xw(db-2)
        for db in range(5): mf(u, 0, db)
        xw(3); xw(4)
    A("L_drain0:")
    A.S("dr1")
    A.arrive(5, t0)
    drain([t % 4 for t in range(16-LA, 16)], 0)
    A("s_branch L_drained")
    A("L_drain1:")
    A.S("dr2")
    drain([t % 4 for t in range(14-LA, 14)], 1)
    A("L_drained:")
    A.arrive(0, 4)
    for a in range(1, 4):
        A(f"s_sub_u32 s68, s3, {a}\ns_and_b32 s68, s68, 3\ns_lshl_b32 s68, s68, 15\nv_add_u32 v{4+a}, s68, v{vA0}")
    A(f"s_add_u32 s{sBAR}, s{sBAR}, 4")
    A(f"s_cmp_lg_u32 s{sPH}, 0\ns_cbranch_scc1 L_end2")
    A.S("loop1")
    def w2_setup():
        A(f"s_lshl_b32 s{sNT}, s{sX}, 2\ns_lshr_b32 s68, s{sJ}, 3\ns_add_u32 s{sNT}, s{sNT}, s68")
        w_setup(A, pW2, 4096, 54)
        A(f"s_mov_b32 s{sM}, s{sLB}")
    A("s_branch L_xchg")
    A("L_end2:")
    Y = 12
    A("s_waitcnt vmcnt(0)")
    for db in range(5):
        a = E+10+2*db; z = Y + 4*db
        A(f"v_lshlrev_b32 v{z}, 16, v{a}\nv_and_b32 v{z+1}, 0xffff0000, v{a}\nv_lshlrev_b32 v{z+2}, 16, v{a+1}\nv_and_b32 v{z+3}, 0xffff0000, v{a+1}")
    for db in range(5):
        for r in range(4): A(f"v_mul_f32 v{Y+4*db+r}, v{Y+4*db+r}, v{E+2+2*r}")
    for i in range(10): A(f"v_cvt_pk_bf16_f32 v{Y+2*i}, v{Y+2*i}, v{Y+2*i+1}")
    for i in range(10): A(f"v_and_b32 v{Y+2*i+1}, 0xffff0000, v{Y+2*i}\nv_lshlrev_b32 v{Y+2*i}, 16, v{Y+2*i}")
    A("L_xchg:")
    A.waitge(0, f"s{sBAR}", 4)
    A.S0("xb")
    for a in range(1, 4):
        for db in range(5):
            r = ACT0 + ((a-1)*5+db)*4
            A(f"ds_read_b128 v[{r}:{r+3}], v{4+a} offset:{16384+((a-1)*5+db)*1024}")
    for a in range(1, 4):
        A(f"s_waitcnt lgkmcnt({(3-a)*5})")
        for db in range(5):
            r = ACT0 + ((a-1)*5+db)*4; c = ACC0 + db*4
            A(f"v_pk_add_f32 v[{c}:{c+1}], v[{c}:{c+1}], v[{r}:{r+1}]\nv_pk_add_f32 v[{c+2}:{c+3}], v[{c+2}:{c+3}], v[{r+2}:{r+3}]")
    b = 8
    A(f"v_lshlrev_b32 v{b}, 16, v{E}\nv_and_b32 v{b+1}, 0xffff0000, v{E}\nv_lshlrev_b32 v{b+2}, 16, v{E+1}\nv_and_b32 v{b+3}, 0xffff0000, v{E+1}")
    R = 36
    if fastr:
        for db in range(5):
            c = ACC0 + db*4; t = R + db*4
            A(f"v_pk_add_f32 v[{t}:{t+1}], v[{c}:{c+1}], v[{b}:{b+1}]\nv_pk_add_f32 v[{t+2}:{t+3}], v[{c+2}:{c+3}], v[{b+2}:{b+3}]")
    else:
        for db in range(5):
            c = ACC0 + db*4; t = R + db*4
            A(f"v_cvt_pk_bf16_f32 v{t}, v{c}, v{c+1}\nv_cvt_pk_bf16_f32 v{t+2}, v{c+2}, v{c+3}")
        for db in range(5):
            t = R + db*4
            A(f"v_and_b32 v{t+1}, 0xffff0000, v{t}\nv_lshlrev_b32 v{t}, 16, v{t}\nv_and_b32 v{t+3}, 0xffff0000, v{t+2}\nv_lshlrev_b32 v{t+2}, 16, v{t+2}")
        for db in range(5):
            t = R + db*4
            A(f"v_pk_add_f32 v[{t}:{t+1}], v[{t}:{t+1}], v[{b}:{b+1}]\nv_pk_add_f32 v[{t+2}:{t+3}], v[{t+2}:{t+3}], v[{b+2}:{b+3}]")
        for db in range(5):
            t = R + db*4
            A(f"v_cvt_pk_bf16_f32 v{t}, v{t}, v{t+1}\nv_cvt_pk_bf16_f32 v{t+2}, v{t+2}, v{t+3}")
        for db in range(5):
            t = R + db*4
            A(f"v_and_b32 v{t+1}, 0xffff0000, v{t}\nv_lshlrev_b32 v{t}, 16, v{t}\nv_and_b32 v{t+3}, 0xffff0000, v{t+2}\nv_lshlrev_b32 v{t+2}, 16, v{t+2}")
    A(f"s_cmp_lg_u32 s{sPH}, 0\ns_cbranch_scc1 L_final")
    A.S("xchg1")
    if b2when == 'x': A.arrive(5, 4)
    k0 = math.sqrt(2/math.pi); k1 = 0.044715
    c0 = -2*k0*L2E; c1 = c0*k1
    A(f"s_mov_b32 s68, {f32bits(c1)}\ns_mov_b32 s69, s68\nv_mov_b32 v6, {f32bits(c0)}\nv_mov_b32 v7, v6")
    Z = 56
    for i in range(10): A(f"v_pk_mul_f32 v[{Z+2*i}:{Z+2*i+1}], v[{R+2*i}:{R+2*i+1}], v[{R+2*i}:{R+2*i+1}]")
    for i in range(10): A(f"v_pk_fma_f32 v[{Z+2*i}:{Z+2*i+1}], v[{Z+2*i}:{Z+2*i+1}], s[68:69], v[6:7]")
    for i in range(10): A(f"v_pk_mul_f32 v[{Z+2*i}:{Z+2*i+1}], v[{Z+2*i}:{Z+2*i+1}], v[{R+2*i}:{R+2*i+1}]")
    for i in range(20): A(f"v_exp_f32 v{Z+i}, v{Z+i}")
    for i in range(20): A(f"v_add_f32 v{Z+i}, 1.0, v{Z+i}")
    for i in range(20): A(f"v_rcp_f32 v{Z+i}, v{Z+i}")
    for i in range(10): A(f"v_pk_mul_f32 v[{Z+2*i}:{Z+2*i+1}], v[{Z+2*i}:{Z+2*i+1}], v[{R+2*i}:{R+2*i+1}]")
    P = 12
    for i in range(10): A(f"v_cvt_pk_bf16_f32 v{P+i}, v{Z+2*i}, v{Z+2*i+1}")
    for p in range(3): A(f"v_permlane16_swap_b32 v{P+4*p}, v{P+4*p+2}\nv_permlane16_swap_b32 v{P+4*p+1}, v{P+4*p+3}")
    A(f"buffer_store_dwordx4 v[{P}:{P+3}], v{E+2}, s[28:31], s84 offen sc1\nbuffer_store_dwordx4 v[{P+4}:{P+7}], v{E+2}, s[28:31], s84 offen offset:2048 sc1")
    A(f"s_mov_b32 exec_lo, 0xffff\ns_mov_b32 exec_hi, 0xffff\nbuffer_store_dwordx4 v[{P+8}:{P+11}], v{E+2}, s[28:31], s85 offen sc1\ns_mov_b64 exec, -1")
    A.S("gst")
    if b2when == 'st': A.arrive(5, 4)
    w2_setup()
    A("s_waitcnt vmcnt(0)")
    if wflag: A.setflag("s50", 4)
    else:
        A.gbar(4)
        A("s_cmp_lg_u32 s3, 0\ns_cbranch_scc1 L_noflag2")
        A(f"s_mov_b64 exec, 0xf\nv_mov_b32 v4, s{sTAG}\nv_lshlrev_b32 v5, 2, v2\nbuffer_store_dword v4, v5, s[24:27], s50 offen sc1\ns_mov_b64 exec, -1")
        A("L_noflag2:")
    A.S("flag2")
    if b2when == 'ack': A.arrive(5, 4)
    A("L_pre2:")
    A(f"s_mov_b32 s{sPH}, 1\ns_add_u32 s{sM}, s{sLB}, {0x4000 if SH == 4 else 0}")
    for a in range(4): A(f"v_and_b32 v{vT+a}, 0xffffbfff, v{vT+a}")
    A(f"s_mul_i32 s68, s{sDT}, 5120\ns_add_u32 s68, s68, {GO}")
    A.srd(16, pWS, 54*40960, "s68")
    A(f"s_mul_i32 s{sA}, s3, 40960\ns_mov_b32 s{sAstep}, {4*40960}\ns_mov_b32 s{sAend}, {54*40960}\ns_mov_b32 s{sAsz}, {54*40960}\ns_mov_b32 s{sN}, 2")
    A(f"s_lshl_b32 s84, s{sNT}, 6\ns_lshl_b32 s68, s3, 4\ns_add_u32 s84, s84, s68")
    A.srd(28, pWS, SZ_X, AT); A.srd(32, pWS, 2048*8, GATE)
    A(f"v_lshrrev_b32 v{E+20}, 4, v2\nv_and_b32 v{E+21}, 15, v2")
    A(f"s_lshl_b32 s85, s84, 1\nv_lshl_add_u32 v{E}, v{E+20}, 3, s85")
    A(f"v_lshlrev_b32 v{E+22}, 5, v{E+20}\ns_lshl_b32 s68, s84, 3")
    A(f"global_load_dwordx2 v[{E}:{E+1}], v{E}, s[{pB2}:{pB2+1}]")
    A(f"buffer_load_dwordx4 v[{E+2}:{E+5}], v{E+22}, s[32:35], s68 offen sc1\nbuffer_load_dwordx4 v[{E+6}:{E+9}], v{E+22}, s[32:35], s68 offen offset:16 sc1")
    A(f"v_lshlrev_b32 v{E+23}, 12, v{E+21}\nv_lshl_add_u32 v{E+23}, v{E+20}, 3, v{E+23}")
    A.srd(32, pOUT, SZ_X)
    A(f"v_mul_u32_u24 v238, 704, v{E+20}\nv_lshl_add_u32 v238, v{E+21}, 1, v238\nv_add_u32 v238, s{sLB}, v238")
    A(f"s_mul_i32 s82, s84, 1280\ns_mul_i32 s69, s{sDT}, 160\ns_add_u32 s82, s82, s69")
    for i in range(3):
        c, row, col = 232+2*i, 233+2*i, 4
        A(f"v_add_u32 v{c}, {64*i}, v2\nv_mul_u32_u24 v{row}, 205, v{c}\nv_lshrrev_b32 v{row}, 11, v{row}")
        A(f"v_mul_u32_u24 v{col}, 10, v{row}\nv_sub_u32 v{col}, v{c}, v{col}\nv_lshlrev_b32 v{col}, 4, v{col}")
        A(f"v_mul_u32_u24 v{c}, 176, v{row}\nv_add3_u32 v{c}, v{c}, v{col}, s{sLB}")
        A(f"v_mul_u32_u24 v{row}, 1280, v{row}\nv_add_u32 v{row}, v{row}, v{col}")
    for i in range(80): A(f"v_mov_b32 v{ACC0+i}, 0")
    A("s_cmp_lg_u32 s3, 0\ns_cbranch_scc1 L_w2")
    A(f"v_lshlrev_b32 v36, 7, v2")
    A(f"s_lshl_b32 s50, s{sDT}, 12\ns_add_u32 s50, s50, {F2}")
    if acttouch: act_touch_addr(40960)
    A("s_mov_b64 exec, 0x7ffffff")
    A.poll4(36, "s50", 40, sleep=psleep)
    if acttouch: act_touch()
    A.S("poll2")
    A.arrive(2, 36)
    A("L_w2:")
    A.waitge(2, 2, 36, sleep=1)
    A.S("seen2")
    A("s_branch L_gemm")
    A("L_final:")
    A.S("xchg2")
    for db in range(5):
        for r in range(4): A(f"v_mul_f32 v{R+4*db+r}, v{R+4*db+r}, v{E+3+2*r}")
    for i in range(10): A(f"v_cvt_pk_bf16_f32 v{R+2*i}, v{R+2*i}, v{R+2*i+1}")
    for i in range(10): A(f"v_and_b32 v{R+2*i+1}, 0xffff0000, v{R+2*i}\nv_lshlrev_b32 v{R+2*i}, 16, v{R+2*i}")
    for i in range(10): A(f"v_pk_add_f32 v[{R+2*i}:{R+2*i+1}], v[{R+2*i}:{R+2*i+1}], v[{Y+2*i}:{Y+2*i+1}]")
    for db in range(5):
        t = R + 4*db
        A(f"v_cvt_pk_bf16_f32 v{t}, v{t}, v{t+1}\nv_cvt_pk_bf16_f32 v{t+1}, v{t+2}, v{t+3}")
        A(f"ds_write_b16 v238, v{t} offset:{32*db}\nds_write_b16_d16_hi v238, v{t} offset:{32*db+176}")
        A(f"ds_write_b16 v238, v{t+1} offset:{32*db+352}\nds_write_b16_d16_hi v238, v{t+1} offset:{32*db+528}")
    A("ds_read_b128 v[96:99], v232\nds_read_b128 v[100:103], v234\nds_read_b128 v[104:107], v236")
    A("s_waitcnt lgkmcnt(2)\nbuffer_store_dwordx4 v[96:99], v233, s[32:35], s82 offen")
    A("s_waitcnt lgkmcnt(1)\nbuffer_store_dwordx4 v[100:103], v235, s[32:35], s82 offen")
    A("s_waitcnt lgkmcnt(0)\ns_mov_b32 exec_hi, 0\nbuffer_store_dwordx4 v[104:107], v237, s[32:35], s82 offen")
    A.st_end()
    A("s_endpgm")
    A("L_freecu:")
    A.arrive(5, 36)
    w2_setup()
    A(f"s_lshl_b32 s68, s{sX}, 3\ns_add_u32 s68, s68, s{sJ}\ns_sub_u32 s68, s68, 48")
    A(f"s_cmp_ge_u32 s68, 32\ns_cbranch_scc1 L_waitf1")
    A(f"s_lshl_b32 s22, s68, 2\ns_add_u32 s22, s22, s3\ns_add_u32 s22, s22, 512")
    A(f"s_add_u32 s23, s{sLB}, 16384\ns_setprio 0\ns_mov_b32 s0, 1\ns_branch L_chan")
    A("L_chan_ret:")
    if prio: A("s_setprio 1")
    A.arrive(5, 36)
    A("s_branch L_pre2")
    A("L_lwave:")
    A("s_waitcnt lgkmcnt(0)")
    A.srd(24, pWS, FLSZ, FL)
    A.srd(28, pU, SZ_X)
    A(f"s_lshl_b32 s84, s{sX}, 2\ns_lshr_b32 s68, s{sJ}, 3\ns_add_u32 s84, s84, s68")
    A(f"s_mul_i32 s70, s84, {64*1280}\ns_mul_i32 s68, s{sDT}, 160\ns_add_u32 s70, s70, s68")
    A("v_mul_u32_u24 v4, 205, v2\nv_lshrrev_b32 v4, 11, v4\nv_mul_u32_u24 v5, 10, v4\nv_sub_u32 v5, v2, v5\nv_mul_u32_u24 v4, 1280, v4\nv_lshl_add_u32 v4, v5, 4, v4")
    A("v_mov_b32 v6, 1120")
    for i in range(10):
        A(f"s_mov_b32 m0, {1024*i}\ns_nop 0\nbuffer_load_dwordx4 v4, s[28:31], s70 offen {xnt} lds")
        if i < 9: A(f"v_add_u32 v5, 4, v5\nv_cmp_le_u32 vcc, 10, v5\nv_add_u32 v4, {6*1280+64}, v4\nv_cndmask_b32 v7, 0, v6, vcc\nv_add_u32 v4, v4, v7\nv_cndmask_b32_e64 v7, 0, 10, vcc\nv_sub_u32 v5, v5, v7")
    w_setup(A, pW1, 3456, 64, loader=True)
    A("s_barrier")
    def lsteps(first_slot, n):
        l = A.lab("l")
        A(f"s_mov_b32 s{sM}, {first_slot*4096}\ns_mov_b32 s{sIt}, 0\ns_mov_b32 s71, s{sW}\n{l}:")
        A(f"s_mul_i32 s70, s{sIt}, s{sWstep}\ns_add_u32 s{sW}, s71, s70")
        for q in range(16):
            A(f"s_add_u32 m0, s{sM}, {(q>>2)*32768 + (q&3)*1024}")
            if q == 0: A("s_nop 0")
            elif q == 1: A(f"s_add_u32 s81, s{sW}, s{sW8}")
            else: A(f"s_add_u32 s81, s81, s{sW8}")
            A(f"buffer_load_dwordx4 v{vW1 if q%2 else vW0}, s[12:15], s{81 if q else sW} offen {dnt} lds")
        A(f"s_add_u32 s{sM}, s{sM}, 4096\ns_add_u32 s{sIt}, s{sIt}, 1\ns_cmp_lt_u32 s{sIt}, {n}\ns_cbranch_scc1 {l}")
        A(f"s_mul_i32 s70, s{sWstep}, {n}\ns_add_u32 s{sW}, s71, s70")
    def wtouch(stride, nrows, tnt=""):
        q = nrows // 8
        A(f"s_and_b32 s68, s{sJ}, 7\ns_mul_i32 s68, s68, {q*stride}\ns_add_u32 s68, s68, s{sW}\nv_mul_u32_u24 v36, {stride}, v2")
        for i in range((q+63)//64):
            if (i+1)*64 > q: A(f"s_mov_b64 exec, {hex((1 << (q-i*64))-1)}" if q-i*64 < 32 else f"s_mov_b32 exec_hi, {hex((1 << (q-i*64-32))-1)}")
            A(f"buffer_load_dword v231, v36, s[12:15], s68 offen {tnt}\ns_add_u32 s68, s68, {64*stride}")
        A("s_mov_b64 exec, -1")
    if codetouch:
        A("s_getpc_b64 s[68:69]\nL_pc:\ns_sub_u32 s68, s68, L_pc-" + KN + "\ns_subb_u32 s69, s69, 0\nv_lshlrev_b32 v22, 7, v2")
        for i in range(3): A("v_min_u32 v23, L_codeend-" + KN + "-4, v22\nglobal_load_dword v231, v23, s[68:69]\nv_add_u32 v22, 0x2000, v22")
    if lprio: A(f"s_setprio {lprio}")
    if tlb:
        A(f"v_lshlrev_b32 v22, 18, v2\nv_min_u32 v22, {FL}, v22\nglobal_load_dword v231, v22, s[{pWS}:{pWS+1}]")
        A(f"v_lshlrev_b32 v22, 16, v2\nv_min_u32 v22, {SZ_X-4}, v22\nglobal_load_dword v231, v22, s[{pOUT}:{pOUT+1}]")
        A(f"v_lshlrev_b32 v22, 17, v2\nv_min_u32 v22, {7077888-4}, v22\nglobal_load_dword v231, v22, s[{pW2}:{pW2+1}]")
        A(f"v_mov_b32 v22, 0\ns_mov_b64 exec, 1\nglobal_load_dword v231, v22, s[{pB1}:{pB1+1}]\nglobal_load_dword v231, v22, s[{pB2}:{pB2+1}]\ns_mov_b64 exec, -1")
    def slice_touch(stride, row0, nrows, colbytes_expr_reg, maxline):
        l = A.lab("t")
        A(f"s_and_b32 s68, s{sJ}, 3\ns_mul_i32 s68, s68, {8*stride}\ns_add_u32 s68, s68, s{colbytes_expr_reg}\ns_add_u32 s68, s68, {row0*stride}")
        A(f"v_lshrrev_b32 v36, 3, v2\nv_mul_u32_u24 v36, {stride}, v36\nv_and_b32 v37, 7, v2\nv_min_u32 v37, {maxline}, v37\nv_lshl_add_u32 v36, v37, 7, v36")
        A(f"s_mov_b32 s{sIt}, 0\n{l}:\nbuffer_load_dword v231, v36, s[12:15], s68 offen {fnt}\ns_add_u32 s68, s68, {32*stride}\ns_add_u32 s{sIt}, s{sIt}, 1\ns_waitcnt vmcnt({fdepth})\ns_cmp_lt_u32 s{sIt}, {nrows//32}\ns_cbranch_scc1 {l}")
    ntch = (16*nt0+63)//64
    A(f"s_cmp_lg_u32 s{sPH}, 0\ns_cbranch_scc1 L_lt0")
    wtouch(3456, 128*nt0, tnt)
    A(f"s_waitcnt vmcnt({ntch})\ns_branch L_lt1\nL_lt0:\ns_waitcnt vmcnt(0)\nL_lt1:")
    A("v_lshrrev_b32 v4, 4, v2\nv_bfe_u32 v5, v2, 2, 2\nv_lshl_add_u32 v5, v4, 3, v5\nv_mul_u32_u24 v5, 160, v5\nv_and_b32 v6, 3, v2\nv_lshl_add_u32 v5, v6, 3, v5")
    A("v_and_b32 v6, 15, v2\nv_lshlrev_b32 v6, 12, v6\nv_lshl_add_u32 v6, v4, 4, v6")
    A.srd(28, pWS, SZ_X, 0x280000)
    A(f"s_mul_i32 s70, s{sDT}, {80*4096}\ns_lshl_b32 s68, s84, 7\ns_add_u32 s70, s70, s68")
    for k in range(10):
        o = (k&1)*5120 + (k>>1)*32
        A(f"ds_read_b64_tr_b16 v[{40+4*k}:{41+4*k}], v5 offset:{o}\nds_read_b64_tr_b16 v[{42+4*k}:{43+4*k}], v5 offset:{o+640}")
    for k in range(10):
        A(f"s_waitcnt lgkmcnt({min(15, 18-2*k)})\nbuffer_store_dwordx4 v[{40+4*k}:{43+4*k}], v6, s[28:31], s70 offen offset:{(k&1)*64} sc1")
        if k & 1: A("s_add_u32 s70, s70, 65536")
    A("s_waitcnt vmcnt(0)")
    A.arrive(8, 36)
    A.S("Lut")
    A(f"s_cmp_lg_u32 s{sPH}, 0\ns_cbranch_scc1 L_lfree")
    if stamp and 'Lt0' in names: A("s_waitcnt vmcnt(0)"); A.S("Lt0")
    if lateack: A.waitge(0, 8, 36, sleep=1)
    else: A.waitge(4, 4, 36, sleep=1)
    A.S("Lds")
    if nt0 < 16:
        A(f"s_add_u32 s{sW}, s{sW}, {nt0*128*3456}")
        wtouch(3456, 128*(16-nt0), tnt)
        A(f"s_sub_u32 s{sW}, s{sW}, {nt0*128*3456}")
    if split1:
        lsteps(0, 4)
        A("s_waitcnt vmcnt(0)")
        A.arrive(6, 36)
        A.S("Lw1a")
        lsteps(4, 4)
    else: lsteps(0, 8)
    npost = 0
    if promote:
        wtouch(3456, 1024, ""); npost = 2
    A(f"s_waitcnt vmcnt({npost})")
    A("L_lfree:")
    A("L_l2:")
    A.arrive(6, 36); A.arrive(9, 36)
    A.S("Lw1")
    A(f"s_lshl_b32 s{sNT}, s{sX}, 2\ns_lshr_b32 s68, s{sJ}, 3\ns_add_u32 s{sNT}, s{sNT}, s68")
    w_setup(A, pW2, 4096, 54, loader=True)
    if w2l2:
        A(f"s_cmp_eq_u32 s{sPH}, 0\ns_cbranch_scc1 L_l3")
        A.waitge(0, 8, 36, sleep=2)
        A(f"s_and_b32 s68, s{sJ}, 7\ns_lshl_b32 s68, s68, 16\ns_lshl_b32 s69, s{sX}, 9\ns_add_u32 s68, s68, s69")
        A("v_lshrrev_b32 v36, 2, v2\nv_lshlrev_b32 v36, 12, v36\nv_and_b32 v37, 3, v2\nv_lshl_add_u32 v36, v37, 7, v36")
        A(f"s_mov_b32 s{sIt}, 0\nL_w2t:\nbuffer_load_dword v231, v36, s[12:15], s68 offen {fnt}\ns_add_u32 s68, s68, {128*4096}\ns_add_u32 s{sIt}, s{sIt}, 1\ns_waitcnt vmcnt({fdepth})\ns_cmp_lt_u32 s{sIt}, 14\ns_cbranch_scc1 L_w2t")
        if allw2:
            A(f"s_lshl_b32 s70, s{sX}, 3\ns_add_u32 s70, s70, s{sJ}\ns_sub_u32 s70, s70, 48\nL_w2u:")
            A(f"s_mul_i32 s71, s70, 21846\ns_lshr_b32 s71, s71, 16\ns_mul_i32 s72, s71, 3\ns_sub_u32 s72, s70, s72")
            A(f"s_lshl_b32 s68, s71, 16\ns_lshl_b32 s72, s72, 9\ns_add_u32 s68, s68, s72")
            A(f"buffer_load_dword v231, v36, s[12:15], s68 offen {fnt}\ns_add_u32 s70, s70, 40\ns_waitcnt vmcnt({fdepth})\ns_cmp_lt_u32 s70, 324\ns_cbranch_scc1 L_w2u")
        A("L_l3:")
    A.waitge(5, 4, 36, sleep=2)
    A.S("Lw2a")
    if t2early: wtouch(4096, 1728, t2nt)
    lsteps(0, 4)
    if split2:
        A("s_waitcnt vmcnt(0)"); A.arrive(2, 36)
    A.waitge(5, 8, 36, sleep=1)
    lsteps(4, 4)
    if promote2: wtouch(4096, 704, "")
    A("s_waitcnt vmcnt(%d)" % (2 if promote2 else 0))
    A.arrive(9, 36)
    if not split2: A.arrive(2, 36)
    A.S("Lw2")
    A(f"ds_read_b32 v36, v{vSY} offset:12\nv_lshlrev_b32 v37, 7, v2\nv_and_b32 v38, 15, v2\nv_lshlrev_b32 v38, 7, v38")
    A(f"s_mul_i32 s51, s{sDT}, {20*128}\ns_add_u32 s51, s51, {F3}")
    A(f"s_waitcnt lgkmcnt(0)\nv_readfirstlane_b32 s{sTAG}, v36")
    A("s_mov_b64 exec, 0xfffff")
    A.poll4(37, "s51", 40, sleep=8)
    A.srd(28, pWS, SZ_X, AT)
    A(f"s_mul_i32 s68, s{sDT}, {80*4096}\ns_lshl_b32 s69, s{sNT}, 7\ns_add_u32 s68, s68, s69\nv_lshlrev_b32 v36, 12, v2\nv_lshlrev_b32 v37, 5, v38")
    A(f"buffer_load_dword v231, v36, s[28:31], s68 offen sc1\ns_add_u32 s68, s68, {64*4096}\nbuffer_load_dword v231, v37, s[28:31], s68 offen sc1")
    A(f"s_mov_b64 exec, 1\nv_mov_b32 v36, 2\nds_add_u32 v{vSY}, v36 offset:28\ns_mov_b64 exec, -1")
    A.S("Lf3")
    A.st_end()
    A("s_endpgm")
    A("L_cwave:")
    A(f"s_lshl_b32 s22, s{sX}, 6\ns_lshl_b32 s68, s{sJ}, 1\ns_add_u32 s22, s22, s68\ns_sub_u32 s68, s3, 4\ns_add_u32 s22, s22, s68")
    A(f"s_mul_i32 s23, s68, {CSZ}\ns_add_u32 s23, s23, {CREG}")
    A("s_waitcnt lgkmcnt(0)")
    A.srd(24, pWS, FLSZ, FL)
    A.srd(16, pWS, 0x500000)
    A("s_barrier")
    A("s_mov_b32 s0, 0")
    cy = yieldln
    A("L_chan:")
    A("s_lshl_b32 s68, s22, 8\nv_lshl_add_u32 v3, v2, 2, s68")
    for i, p in enumerate((pLA, pAI, pCR, pCI)): A(f"global_load_dword v{4+i}, v3, s[{p}:{p+1}] {xnt}")
    A(f"s_lshr_b32 s68, s22, 1\ns_lshl_b32 s68, s68, 2\ns_load_dword s20, s[{pLDT}:{pLDT+1}], s68\ns_load_dword s21, s[{pDS}:{pDS+1}], s68")
    sL, sLlo, sLn2, sI, sIlo = 28, 29, 30, 31, 32
    A(f"s_mov_b32 s{sL}, {f32bits(L2E_HI)}\ns_mov_b32 s{sLlo}, {f32bits(L2E_LO)}\ns_mov_b32 s{sLn2}, {f32bits(math.log(2))}\ns_mov_b32 s{sI}, {f32bits(I2P_HI)}\ns_mov_b32 s{sIlo}, {f32bits(I2P_LO)}")
    A("s_mov_b32 s34, 0x46800000\ns_mov_b32 s35, 0x46800000")
    A("v_lshl_add_u32 v8, v2, 2, s23")
    A("v_and_b32 v9, 15, v2\nv_lshrrev_b32 v10, 4, v2")
    A("v_mul_u32_u24 v11, 272, v9\nv_lshl_add_u32 v11, v10, 4, v11\nv_add_u32 v11, s23, v11")
    ACC = 24
    for i in range(12): A(f"v_mov_b32 v{ACC+i}, 0")
    A("s_and_b32 s68, s22, 1\ns_lshl_b32 s68, s68, 4")
    A("s_waitcnt lgkmcnt(0)")
    A("s_lshr_b32 s20, s20, s68\ns_lshl_b32 s20, s20, 16\ns_lshr_b32 s21, s21, s68\ns_lshl_b32 s21, s21, 16")
    A("v_mov_b32 v12, s20")
    A.exp_precise(12, 12, 13, 14, sL, sLlo, sLn2)
    A.bfr(12, 12)
    A("s_waitcnt vmcnt(0)")
    if yieldln: A.waitge(0, 4, 13, sleep=2)
    A.S("Cpar")
    A("v_lshlrev_b32 v13, 16, v6\nv_lshlrev_b32 v14, 16, v7\nv_and_b32 v15, 0x7fff0000, v6\nv_and_b32 v16, 0x7fff0000, v7")
    A("v_max3_f32 v13, |v13|, |v14|, v15\nv_max_f32 v13, v13, v16")
    for ctl in ("quad_perm:[1,0,3,2]", "quad_perm:[2,3,0,1]", "row_half_mirror", "row_mirror"):
        A(f"v_max_f32_dpp v13, v13, v13 {ctl} row_mask:0xf bank_mask:0xf")
    for i in range(4): A(f"v_readlane_b32 s{82+i}, v13, {16*i}")
    A("s_max_u32 s82, s82, s83\ns_max_u32 s84, s84, s85\ns_max_u32 s82, s82, s84\ns_lshr_b32 s82, s82, 23\ns_max_u32 s82, s82, 25\ns_min_u32 s82, s82, 254")
    A("s_sub_u32 s83, 265, s82\ns_lshl_b32 s83, s83, 23")
    A("s_sub_u32 s84, s82, 24\ns_lshl_b32 s84, s84, 23")
    A("s_mov_b32 s85, 16")
    E1, E8, H, F = 40, 42, 44, 46
    rowof = {}
    for e in range(8): rowof[(0,e)] = e; rowof[(1,e)] = 8+e
    for n,(i,e) in enumerate([(2,0),(2,4),(3,0),(3,4),(2,2),(2,6),(3,2),(3,6),(4,0),(4,4),(5,0),(5,4),(6,0),(6,4),(7,0),(7,4)]): rowof[(i,e)] = 16+n
    for i in range(8,17): rowof[(i,0)] = 32+i-8
    def cmul(d, x, y):
        return [f"v_pk_mul_f32 v[{d}:{d+1}], v[{x}:{x+1}], v[{y}:{y+1}] op_sel:[0,0] op_sel_hi:[0,1]",
                f"v_pk_fma_f32 v[{d}:{d+1}], v[{x}:{x+1}], v[{y}:{y+1}], v[{d}:{d+1}] op_sel:[1,1,0] op_sel_hi:[1,0,1] neg_lo:[1,0,0]"]
    A("L_kpass:")
    for d, s in ((13,4),(14,5),(F,6),(F+1,7)): A(f"v_lshlrev_b32 v{d}, s85, v{s}\nv_and_b32 v{d}, 0xffff0000, v{d}")
    A.exp_precise(13, 13, 15, 16, sL, sLlo, sLn2)
    A(f"v_mul_f32 v14, v14, v12")
    A.bfr(13, 13)
    A(f"v_mul_f32 v15, s{sI}, v14\nv_mul_f32 v13, v13, v12\nv_fma_f32 v16, v14, s{sI}, -v15\nv_mul_f32 v13, s{sL}, v13\nv_fma_f32 v16, v14, s{sIlo}, v16")
    A(f"v_mul_f32 v{F}, s83, v{F}\nv_mul_f32 v{F+1}, s83, v{F+1}")
    gens = ((1,E1),(8,E8),(128,H))
    for n,(q,Eq) in enumerate(gens): A(f"v_mul_f32 v{17+2*n}, {f32bits(-q)}, v13\nv_mul_f32 v{18+2*n}, {f32bits(q)}, v15")
    for n,(q,Eq) in enumerate(gens): A(f"v_exp_f32 v{17+2*n}, v{17+2*n}\nv_fract_f32 v{18+2*n}, v{18+2*n}\nv_fmamk_f32 v{18+2*n}, v16, {f32bits(q)}, v{18+2*n}")
    for n,(q,Eq) in enumerate(gens): A(f"v_cos_f32 v{Eq}, v{18+2*n}\nv_sin_f32 v{Eq+1}, v{18+2*n}")
    for n,(q,Eq) in enumerate(gens): A(f"v_mul_f32 v{Eq}, v{Eq}, v{17+2*n}\nv_mul_f32 v{Eq+1}, v{Eq+1}, v{17+2*n}")
    def emit(src, row, tmp, neg):
        return [f"v_cvt_pk_f16_f32 v{tmp}, v{src}, {'-' if neg else ''}v{src+1}", f"ds_write_b32 v8, v{tmp} offset:{row*272}"]
    def chain(e, n, pp, tmps):
        out = []; prev = F+2*e
        for i in range(1, n+1):
            d = pp[i % 2]
            out += cmul(d, prev, H) + emit(d, rowof[(i,e)], tmps[i%2], True); prev = d
        return out
    T1 = ["v_mov_b32_e64 v74, s34", f"v_pk_mul_f32 v[62:63], v[{E8}:{E8+1}], s[34:35]", "v_cvt_pk_f16_f32 v74, v74, 0", f"ds_write_b32 v8, v74 offset:{41*272}"] + emit(62, 42, 75, False)
    prev = 62
    for j in range(2, 16):
        d = 62 + 2*((j+1) % 2)
        T1 += cmul(d, prev, E8) + emit(d, 41+j, 74+(j%2), False); prev = d
    T1 += chain(6, 3, (62,64), (74,75))
    T3 = chain(0, 16, (66,68), (76,77)) + chain(2, 3, (66,68), (76,77))
    T2 = emit(F, 0, 78, True)
    for e in range(1, 8): T2 += cmul(F+2*e, F+2*e-2, E1) + emit(F+2*e, e, 78+(e%2), True)
    for n,e in enumerate((1,3,5,7)):
        d = 70+2*(n%2)
        T2 += cmul(d, F+2*e, H) + emit(d, rowof[(1,e)], 78+(n%2), True)
    T2 += chain(4, 7, (70,72), (78,79))
    A(".p2align 3")
    for i in range(max(len(T1),len(T2),len(T3))):
        for T in (T2, T3, T1):
            if i < len(T): A(T[i])
    A("s_waitcnt lgkmcnt(0)")
    for ks in range(4): A(f"ds_read_b128 v[{80+4*ks}:{83+4*ks}], v11 offset:{41*272+ks*64}")
    for T in range(3):
        for ks in range(4): A(f"ds_read_b128 v[{96+16*T+4*ks}:{99+16*T+4*ks}], v11 offset:{T*16*272+ks*64}")
    for T in range(3):
        A(f"s_waitcnt lgkmcnt({8-4*T})")
        for ks in range(4):
            A(f"v_mfma_f32_16x16x32_f16 v[{ACC+4*T}:{ACC+4*T+3}], v[{96+16*T+4*ks}:{99+16*T+4*ks}], v[{80+4*ks}:{83+4*ks}], v[{ACC+4*T}:{ACC+4*T+3}]")
    A("s_sub_u32 s85, s85, 16\ns_cbranch_scc0 L_kpass")
    A("v_mul_f32 v12, s84, v12")
    A("v_lshlrev_b32 v13, 5, v9\nv_add_u32 v13, s23, v13")
    A("v_lshrrev_b32 v14, 1, v10\nv_lshlrev_b32 v14, 9, v14\nv_and_b32 v15, 1, v10\nv_lshl_add_u32 v14, v15, 4, v14\nv_add_u32 v14, v14, v13")
    A("v_max_u32 v15, 1, v10\nv_lshlrev_b32 v15, 10, v15\nv_cmp_eq_u32 vcc, 1, v10\nv_cndmask_b32_e64 v16, 0, 8, vcc")
    A("v_add3_u32 v15, v15, v16, v13\nv_lshl_add_u32 v16, v10, 11, v13")
    for i in range(12): A(f"v_mul_f32 v{ACC+i}, v{ACC+i}, v12")
    A(f"ds_write_b128 v14, v[{ACC}:{ACC+3}]")
    A(f"ds_write2_b32 v15, v{ACC+4}, v{ACC+5} offset0:0 offset1:4\nds_write2_b32 v15, v{ACC+6}, v{ACC+7} offset0:128 offset1:132")
    for r in range(4): A(f"ds_write_b32 v16, v{ACC+8+r} offset:{4096+512*r}")
    A("v_lshl_add_u32 v13, v2, 5, s23")
    A("v_sub_u32 v14, 63, v2\nv_lshl_add_u32 v14, v14, 4, s23")
    A("ds_read_b128 v[40:43], v13\nds_read_b128 v[44:47], v13 offset:16\nds_read_b32 v48, v13 offset:32")
    A("ds_read_b32 v49, v13 offset:2048\nds_read_b32 v50, v13 offset:2064\nds_read_b32 v51, v13 offset:2080")
    A("ds_read_b32 v52, v13 offset:4096\nds_read_b32 v53, v13 offset:4128\nds_read_b32 v54, v13 offset:6144\nds_read_b32 v55, v13 offset:6176")
    A("v_cmp_le_u32 vcc, 32, v2\nv_and_b32 v15, 1, v2\nv_cmp_eq_u32 s[82:83], 1, v15")
    A("v_mov_b32 v4, 0\nv_mov_b32 v5, 0\nv_lshl_add_u32 v6, v2, 3, s23")
    A("s_waitcnt lgkmcnt(0)")
    A(f"ds_write_b64 v6, v[4:5] offset:{KRO+4096}")
    A("s_mov_b64 exec, 0xf\nds_write_b64 v6, v[4:5]\ns_mov_b64 exec, -1")
    A("v_cndmask_b32 v41, v41, v40, vcc\nv_cndmask_b32 v43, v43, v44, vcc\nv_cndmask_b32 v45, v45, v44, vcc\nv_cndmask_b32 v47, v47, v48, vcc")
    A("v_cvt_pk_bf16_f32 v56, v47, v46\nv_cvt_pk_bf16_f32 v57, v45, v44\nv_cvt_pk_bf16_f32 v58, v43, v42\nv_cvt_pk_bf16_f32 v59, v41, v40")
    A(f"ds_write_b128 v14, v[56:59] offset:{KRO+3072}")
    A("v_cvt_pk_bf16_f32 v60, v51, v51\nv_cvt_pk_bf16_f32 v61, v50, v50\nv_cvt_pk_bf16_f32 v62, v50, v49\nv_cvt_pk_bf16_f32 v63, v49, v49")
    A(f"ds_write_b128 v14, v[60:63] offset:{KRO+2048}")
    for n,(c,nx) in enumerate(((52,53),(54,55))):
        o = 64+4*n
        A(f"v_cndmask_b32 v40, v{c}, v{nx}, s[82:83]")
        A(f"v_cvt_pk_bf16_f32 v{o}, v{nx}, v{nx}\nv_cvt_pk_bf16_f32 v{o+2}, v{c}, v{c}\nv_cvt_pk_bf16_f32 v{o+1}, v{nx}, v40\nv_mov_b32 v{o+3}, v{o+2}")
        A(f"ds_write_b128 v14, v[{o}:{o+3}] offset:{KRO+1024*(1-n)}")
    A.S("Ckgen")
    A.srd(28, pWS, SZ_X, 0x280000)
    A("v_lshlrev_b32 v3, 4, v2\ns_lshl_b32 s82, s22, 12")
    A("v_lshl_add_u32 v7, v2, 4, s23")
    A("v_and_b32 v10, 1, v9\nv_add_u32 v11, v9, v10\nv_lshrrev_b32 v19, 4, v2\nv_lshl_add_u32 v11, v19, 3, v11\nv_lshlrev_b32 v11, 1, v11")
    A(f"v_xor_b32 v10, 1, v10\nv_mul_u32_u24 v10, {U1O}, v10\nv_add3_u32 v12, v11, v10, s23")
    for m in range(1, 4): A(f"v_add_u32 v{12+m}, {1024*m}, v12")
    A(f"v_lshlrev_b32 v16, 4, v19\nv_lshlrev_b32 v17, 5, v9\nv_sub_u32 v16, v16, v17\ns_add_u32 s83, s23, {KRO+480}\nv_add_u32 v16, s83, v16")
    A("v_lshl_add_u32 v18, v19, 3, v17\nv_add_u32 v18, s23, v18")
    A("v_and_b32 v20, 1, v19\nv_lshl_add_u32 v17, v20, 9, v17\nv_lshrrev_b32 v20, 1, v19\nv_lshl_add_u32 v17, v20, 4, v17")
    if gprio: A(f"s_setprio {gprio}")
    waitF1(True)
    if gwait:
        k = A.lab("g")
        A(f"s_cmp_lg_u32 s{sPH}, 0\ns_cbranch_scc1 {k}")
        A.waitge(5, gwait, 36, sleep=4)
        A(f"{k}:")
    A.S("Cseen")
    A("s_add_u32 m0, s23, 32\ns_nop 0")
    for i in range(4): A(f"buffer_load_dwordx4 v3, s[28:31], s82 offen offset:{1024*i} sc1 lds")
    CA, CB, CACC = 24, 56, 152
    for i in range(32): A(f"v_mov_b32 v{CACC+i}, 0")
    A.srd(28, pWS, SZ_X, AT)
    A("s_mov_b32 s20, s21\ns_lshl_b32 s82, s22, 12\ns_mov_b32 s85, 0")
    A("s_waitcnt vmcnt(0)")
    A.S("Cgat")
    for i in range(4): A(f"ds_read_b128 v[{24+8*i}:{27+8*i}], v7 offset:{1024*i}\nds_read_b32 v{28+8*i}, v7 offset:{1024*i+16}")
    A("ds_read_b128 v[56:59], v7 offset:4096\nds_read_b32 v60, v7 offset:4112")
    for i in range(5):
        A(f"s_waitcnt lgkmcnt({8-2*i})")
        r = 24+8*i; o = 64+4*i
        for q in range(4): A(f"v_alignbit_b32 v{o+q}, v{r+q+1}, v{r+q}, 16")
        if i == 4: A("s_mov_b64 exec, 3")
        A(f"ds_write_b128 v7, v[{o}:{o+3}] offset:{U1O+1024*i}")
    A("s_mov_b64 exec, -1")
    A.S("Cu1")
    def loads(s, rel):
        out = []
        for x in range(8):
            a = CA + 64*s + 4*x; b = CB + 64*s + 4*x
            o = 128*(x & 1) + 16*rel
            out.append(f"ds_read_b128 v[{b}:{b+3}], v16 offset:{512*(7-x)+64*rel}")
            out.append(f"ds_read2_b32 v[{a}:{a+1}], v{12+(x>>1)} offset0:{o} offset1:{o+1}")
            out.append(f"ds_read2_b32 v[{a+2}:{a+3}], v{12+(x>>1)} offset0:{o+2} offset1:{o+3}")
        return out
    A("v_mov_b32 v21, 0")
    if cwait:
        k = A.lab("g")
        A(f"s_cmp_lg_u32 s{sPH}, 0\ns_cbranch_scc1 {k}")
        A.waitge(5, cwait, 36, sleep=2)
        A(f"{k}:")
    if cprio: A(f"s_setprio {cprio}")
    for l in loads(0, 0): A(l)
    A(".p2align 3\nL_conv:")
    for s in range(2):
        A("s_waitcnt lgkmcnt(0)\ns_nop 0")
        if yieldx:
            y1 = A.lab("y")
            A(f"v_readfirstlane_b32 s68, v21\ns_lshl_b32 s69, s{sPH}, 4\ns_add_u32 s68, s68, s69\ns_sub_u32 s68, s68, 1\ns_cmp_lt_u32 s68, 7\ns_cbranch_scc0 {y1}")
            A.waitge(5, 8, 21, sleep=2)
            A(f"{y1}:\nds_read_b32 v21, v{vSY} offset:20")
        nxt = loads(1-s, s+1)
        cnt = 0
        for kap in range(8):
            for mt in range(kap, 8):
                a = CA + 64*s + 4*kap; b = CB + 64*s + 4*(mt-kap); c = CACC + 4*mt
                A(f"v_mfma_f32_16x16x32_bf16 v[{c}:{c+3}], v[{a}:{a+3}], v[{b}:{b+3}], v[{c}:{c+3}]")
                if cnt < len(nxt): A(nxt[cnt])
                cnt += 1
    for r in (12, 13, 14, 15, 16): A(f"v_add_u32 v{r}, 128, v{r}")
    if not noconv: A("s_add_u32 s85, s85, 1\ns_cmp_lt_u32 s85, 4\ns_cbranch_scc1 L_conv")
    A("s_waitcnt lgkmcnt(0)")
    if cprio: A("s_setprio 0")
    A.S("Cconv")
    for mt in range(8): A(f"ds_read_b64 v[{24+4*mt}:{25+4*mt}], v18 offset:{32+512*mt}")
    Y = 56
    for mt in range(8): A(f"v_cvt_pk_bf16_f32 v{Y+4*mt}, v{CACC+4*mt}, v{CACC+4*mt+1}\nv_cvt_pk_bf16_f32 v{Y+4*mt+2}, v{CACC+4*mt+2}, v{CACC+4*mt+3}")
    for i in range(16): A(f"v_and_b32 v{Y+2*i+1}, 0xffff0000, v{Y+2*i}\nv_lshlrev_b32 v{Y+2*i}, 16, v{Y+2*i}")
    A("s_waitcnt lgkmcnt(0)")
    for mt in range(8):
        t = 24+4*mt
        A(f"v_lshlrev_b32 v{t+2}, 16, v{t+1}\nv_and_b32 v{t+3}, 0xffff0000, v{t+1}\nv_and_b32 v{t+1}, 0xffff0000, v{t}\nv_lshlrev_b32 v{t}, 16, v{t}")
    for i in range(16): A(f"v_pk_mul_f32 v[{24+2*i}:{25+2*i}], v[{24+2*i}:{25+2*i}], s[20:21]")
    for i in range(16): A(f"v_cvt_pk_bf16_f32 v{24+2*i}, v{24+2*i}, v{25+2*i}")
    for i in range(16): A(f"v_and_b32 v{25+2*i}, 0xffff0000, v{24+2*i}\nv_lshlrev_b32 v{24+2*i}, 16, v{24+2*i}")
    for i in range(16): A(f"v_pk_add_f32 v[{24+2*i}:{25+2*i}], v[{24+2*i}:{25+2*i}], v[{Y+2*i}:{Y+2*i+1}]")
    for i in range(16): A(f"v_cvt_pk_bf16_f32 v{88+i}, v{24+2*i}, v{25+2*i}")
    for p in range(4): A(f"v_permlane16_swap_b32 v{88+4*p}, v{90+4*p}\nv_permlane16_swap_b32 v{89+4*p}, v{91+4*p}")
    for p in range(4): A(f"buffer_store_dwordx4 v[{88+4*p}:{91+4*p}], v17, s[28:31], s82 offen offset:{1024*p} sc1")
    A(f"s_lshr_b32 s82, s22, 2\ns_lshl_b32 s82, s82, 7\ns_and_b32 s83, s22, 3\ns_lshl_b32 s83, s83, 2\ns_add_u32 s82, s82, s83\ns_add_u32 s82, s82, {F3}\ns_waitcnt vmcnt(0)")
    A.setflag("s82", 4)
    A("s_cmp_eq_u32 s0, 1\ns_cbranch_scc1 L_chan_ret")
    A.st_end()
    A("L_end:\ns_endpgm\nL_codeend:")
    ref = open(f"cdna_kernels/{NAME}.s.ref").read().split("\n")
    head = [l for l in ref if l.startswith(";") and "@launch" not in l]
    out = head + [f"; @launch grid=(256,1,1) block=(448,1,1) lds={LDS_TOTAL}", '.amdgcn_target "amdgcn-amd-amdhsa--gfx950"\n.text']
    out += fix_hazards(A.L)
    out += ['.section .rodata,"a"', kdesc(KN, 240, 102)]
    return "\n".join(out) + "\n"

if __name__ == "__main__":
    path = sys.argv[1] if len(sys.argv) > 1 else f"cdna_kernels/{NAME}.s"
    kw = eval("dict(%s)" % sys.argv[2]) if len(sys.argv) > 2 else {}
    open(path, "w").write(build(**kw))
```

```python
import math, struct, sys
from asmlib import *
import numpy as np

NAME = "gated_mix__ssm_conv_s4d__mixer_token_mlp__prompt"
KN = NAME + "_kernel"
HU, GO, AT, GATE, STA, FL = 0, 0x500000, 0x780000, 0xA00000, 0xB00000, 0xC00000
F1, F2, F3, FLSZ = 0x1000, 0x10000, 0x20000, 0x40000
SZ_X = 2048*640*2
L2E = 1.4426950408889634
L2E_HI = float(np.float32(L2E)); L2E_LO = L2E - L2E_HI
I2P = 1/(2*math.pi)
I2P_HI = float(np.float32(I2P)); I2P_LO = I2P - I2P_HI
pU, pLA, pAI, pCR, pCI, pLDT, pDS = 36, 38, 40, 42, 44, 46, 48
pW1, pB1, pW2, pB2, pGW, pOUT, pDBG, pWS = 52, 54, 56, 58, 60, 62, 64, 66
sTAG, sX, sJ, sDT, sNT = 6, 8, 9, 10, 11
sLB = 7
sPH = 4
sBAR = 5
CREG = 131072; CSZ = 57*272
SYNC = CREG + 2*CSZ + 96
LDS_TOTAL = 163840
STG = 24576
U1O, KRO = 4160, 8320
WF0, ACT0, ACC0 = 4, 36, 116
vW0, vW1, vA0, vA1, vT = 196, 197, 198, 199, 200
t0, t1 = 204, 205
E = 206
vSY = 230
SPIN = 1 << 18

class K:
    def __init__(self, stamp): self.L = []; self.stamp = stamp; self.nl = 0
    def __call__(self, s): self.L.append(s)
    def lab(self, p): self.nl += 1; return f"L{p}{self.nl}"
    def srd(self, d, base, size, off=None):
        if off is None:
            self(f"s_mov_b32 s{d}, s{base}\ns_and_b32 s{d+1}, s{base+1}, 0xffff")
        else:
            self(f"s_add_u32 s{d}, s{base}, {off}\ns_addc_u32 s{d+1}, s{base+1}, 0\ns_and_b32 s{d+1}, s{d+1}, 0xffff")
        self(f"s_mov_b32 s{d+2}, {size}\ns_mov_b32 s{d+3}, 0x20000")
    def bfr(self, dst, src):
        self(f"v_cvt_pk_bf16_f32 v{dst}, v{src}, v{src}\nv_and_b32 v{dst}, 0xffff0000, v{dst}")
    def exp_precise(self, dst, x, t, r, sL, sLlo, sLn2):
        self(f"v_mul_f32 v{t}, s{sL}, v{x}\nv_fma_f32 v{r}, v{x}, s{sL}, -v{t}\nv_fma_f32 v{r}, v{x}, s{sLlo}, v{r}")
        self(f"v_exp_f32 v{t}, v{t}\nv_mul_f32 v{r}, s{sLn2}, v{r}\nv_fma_f32 v{dst}, v{t}, v{r}, v{t}")
    def st(self, i):
        if self.stamp: self(f"{'s_memtime' if self.stamp == 2 else 's_memrealtime'} s[{90+2*min(i,5)}:{91+2*min(i,5)}]")
    def S(self, name):
        if self.stamp:
            for i, n in enumerate(self.names):
                if name in n.split('/'): self.st(1 + i)
    def S0(self, name):
        if self.stamp and any(name in n.split('/') for n in self.names):
            l = self.lab("z")
            self(f"s_cmp_lg_u32 s{sPH}, 0\ns_cbranch_scc1 {l}"); self.S(name); self(f"{l}:")
    def st_end(self):
        if not self.stamp: return
        A = self
        if self.dbgout:
            k = A.lab("d")
            A("s_waitcnt vmcnt(0)"); A.st(7); A("s_waitcnt lgkmcnt(0)")
            A(f"s_cmp_lg_u32 s3, 0\ns_cbranch_scc1 {k}")
            if self.dbgout == 1:
                A(f"s_cmp_ge_u32 s2, 8\ns_cbranch_scc1 {k}\ns_mov_b64 exec, 1\ns_lshl_b32 s68, s2, 2\nv_mov_b32 v3, s68\nv_mov_b32 v4, s90\nv_mov_b32 v5, s100")
                A(f"global_store_dword v3, v4, s[{pDBG}:{pDBG+1}]\nglobal_store_dword v3, v5, s[{pDBG}:{pDBG+1}] offset:32")
            else:
                A(f"s_and_b32 s68, s2, 0xfb\ns_cmp_lg_u32 s68, 0\ns_cbranch_scc1 {k}\ns_mov_b64 exec, 1\ns_lshl_b32 s68, s2, 3\nv_mov_b32 v3, s68")
                for i in range(8): A(f"s_sub_u32 s69, s{90+2*min(i,5)}, s90\nv_mov_b32 v{4+i}, s69")
                A(f"global_store_dwordx4 v3, v[4:7], s[{pDBG}:{pDBG+1}]\nglobal_store_dwordx4 v3, v[8:11], s[{pDBG}:{pDBG+1}] offset:16")
            A(f"{k}:")
            return
        A("s_waitcnt vmcnt(0)"); A.st(7); A("s_waitcnt lgkmcnt(0)")
        A(f"s_lshl_b32 s68, s2, 3\ns_add_u32 s68, s68, s3\ns_lshl_b32 s68, s68, 5\ns_add_u32 s68, s68, {STA}")
        A("s_mov_b64 exec, 1")
        for i in range(8): A(f"v_mov_b32 v{4+i}, " + (f"s{90+2*i}" if i < 5 else "s100" if i == 7 else "0"))
        A(f"v_mov_b32 v3, s68\nglobal_store_dwordx4 v3, v[4:7], s[{pWS}:{pWS+1}]\nglobal_store_dwordx4 v3, v[8:11], s[{pWS}:{pWS+1}] offset:16")
    def arrive(self, word, tmp):
        self(f"s_mov_b64 exec, 1\nv_mov_b32 v{tmp}, 1\nds_add_u32 v{vSY}, v{tmp} offset:{4*word}\ns_mov_b64 exec, -1")
    def waitge(self, word, target, tmp, sleep=0):
        l = self.lab("w"); e = self.lab("e")
        self(f"s_mov_b32 s69, 0\n{l}:\nds_read_b32 v{tmp}, v{vSY} offset:{4*word}\ns_add_u32 s69, s69, 1\ns_waitcnt lgkmcnt(0)\nv_readfirstlane_b32 s68, v{tmp}")
        self(f"s_cmp_ge_u32 s68, {target}\ns_cbranch_scc1 {e}")
        if sleep: self(f"s_sleep {sleep}")
        self(f"s_cmp_lt_u32 s69, {SPIN}\ns_cbranch_scc1 {l}\n{e}:")
    def gbar(self, tmp):
        self(f"s_add_u32 s{sBAR}, s{sBAR}, 4")
        self.arrive(0, tmp); self.waitge(0, f"s{sBAR}", tmp)
    def poll(self, loads, regs_, sleep=0):
        l = self.lab("p"); e = self.lab("q")
        self(f"s_mov_b32 s69, 0\n{l}:")
        for (va, so), r in zip(loads, regs_): self(f"buffer_load_dword v{r}, v{va}, s[24:27], {so} offen sc1")
        self("s_add_u32 s69, s69, 1\ns_waitcnt vmcnt(0)")
        for r in regs_: self(f"v_xor_b32 v{r}, s{sTAG}, v{r}")
        for r in regs_[1:]: self(f"v_or_b32 v{regs_[0]}, v{regs_[0]}, v{r}")
        self(f"v_cmp_ne_u32 vcc, 0, v{regs_[0]}\ns_cbranch_vccz {e}\ns_sleep {sleep}\ns_cmp_lt_u32 s69, {SPIN>>4}\ns_cbranch_scc1 {l}\n{e}:")
    def pollm(self, loads, regs_, masks, sleep=0):
        l = self.lab("p"); e = self.lab("q")
        for m in masks: self(f"s_mov_b64 s[{m}:{m+1}], -1")
        self(f"s_mov_b32 s69, 0\n{l}:")
        for (va, so), r, m in zip(loads, regs_, masks):
            k = self.lab("k")
            self(f"s_mov_b64 exec, s[{m}:{m+1}]\ns_cbranch_execz {k}\nbuffer_load_dword v{r}, v{va}, s[24:27], {so} offen sc1\n{k}:")
        self("s_add_u32 s69, s69, 1\ns_waitcnt vmcnt(0)")
        for r, m in zip(regs_, masks):
            self(f"s_mov_b64 exec, s[{m}:{m+1}]\nv_cmp_ne_u32 s[{m}:{m+1}], s{sTAG}, v{r}")
        self("s_mov_b64 exec, -1")
        self(f"s_or_b64 vcc, s[{masks[0]}:{masks[0]+1}], s[{masks[1]}:{masks[1]+1}]")
        for m in masks[2:]: self(f"s_or_b64 vcc, vcc, s[{m}:{m+1}]")
        self(f"s_cbranch_scc0 {e}\ns_sleep {sleep}\ns_cmp_lt_u32 s69, {SPIN>>4}\ns_cbranch_scc1 {l}\n{e}:")
    def poll4(self, va, so, r, sleep=0):
        l = self.lab("p"); e = self.lab("q")
        self(f"s_mov_b32 s69, 0\n{l}:")
        self(f"buffer_load_dwordx4 v[{r}:{r+3}], v{va}, s[24:27], {so} offen sc1")
        self("s_add_u32 s69, s69, 1\ns_waitcnt vmcnt(0)")
        for i in range(4): self(f"v_xor_b32 v{r+i}, s{sTAG}, v{r+i}")
        self(f"v_or3_b32 v{r}, v{r}, v{r+1}, v{r+2}\nv_or_b32 v{r}, v{r}, v{r+3}")
        self(f"v_cmp_ne_u32 vcc, 0, v{r}\ns_and_b64 exec, exec, vcc\ns_cbranch_execz {e}\ns_sleep {sleep}\ns_cmp_lt_u32 s69, {SPIN>>4}\ns_cbranch_scc1 {l}\n{e}:\ns_mov_b64 exec, -1")
    def setflag(self, soff, tmp):
        self(f"s_mov_b64 exec, 1\nv_mov_b32 v{tmp}, s{sTAG}\nv_mov_b32 v{tmp+1}, 0\nbuffer_store_dword v{tmp}, v{tmp+1}, s[24:27], {soff} offen sc1\ns_mov_b64 exec, -1")

sA, sAstep, sAend, sAsz = 70, 71, 72, 73
sW, sWstep, sWend, sW8 = 74, 75, 76, 77
sM, sIt, sN = 78, 79, 80
DNT = ""
sDA, sDW = 20, 86
def dma_step(A, slot_imm=None, adv=None):
    for i in range(4):
        A(f"s_add_u32 m0, s{sM}, {(slot_imm or 0) + i*1024}")
        if i == 0: A("s_nop 0")
        elif i == 1: A(f"s_add_u32 s81, s{sW}, s{sW8}")
        else: A(f"s_add_u32 s81, s81, s{sW8}")
        A(f"buffer_load_dwordx4 v{vW1 if i%2 else vW0}, s[12:15], s{81 if i else sW} offen {DNT} lds")
    A(f"s_add_u32 s{sW}, s{sW}, s{adv or sWstep}")
def w_setup(A, ptr, stride, ktot, loader=False):
    A.srd(12, ptr, 7077888)
    A(f"v_lshrrev_b32 v{t0}, 3, v2\nv_mul_u32_u24 v{vW0}, {stride}, v{t0}\nv_and_b32 v{t1}, 7, v2")
    A(f"v_and_b32 v{t0}, 2, v{t0}\nv_xor_b32 v{t1}, v{t1}, v{t0}")
    A(f"v_lshl_add_u32 v{vW0}, v{t1}, 4, v{vW0}\nv_xor_b32 v{vW1}, 64, v{vW0}")
    if loader: A(f"s_lshl_b32 s{sW}, s{sNT}, 7")
    else: A(f"s_add_u32 s{sW}, s3, 32\ns_mul_i32 s{sW}, s{sW}, {32*stride}\ns_lshl_b32 s81, s{sNT}, 7\ns_add_u32 s{sW}, s{sW}, s81")
    A(f"s_mov_b32 s{sWstep}, {128*stride}\ns_mov_b32 s{sWend}, {ktot*32*stride}\ns_mov_b32 s{sW8}, {8*stride}")

def build(stamp=False, touch1=True, touch2=True, codetouch=True, prio=True, npre=4, st2=False, noconv=False, actmod='sc1', acttouch=False, w2l2=True, fastr=False, lateack=True, maskpoll=True, nt0=16, fdepth=2, lprio=0, gate2=6, wflag=False, allw2=False, b2when='ack', split1=False, cprio=0, gprio=0, split2=True, early2=False, promote2=False, pnt='', t2nt='', promote=True, xnt='nt', tnt='nt', dnt='', fnt='', latepoll=True, psleep=1, tlb=False, posttouch=True, yieldln=True, yieldx=False, w2depth=8, t2early=True, dbg='', names='seen1 loop1 flag2 seen2', LA=3, SH=4, dbgout=0, gwait=0, cwait=0, pat=(2,1,1,1), actpos='grp'):
    global DNT
    DNT = dnt
    A = K(stamp); A.names = names.split(); A.dbgout = dbgout
    A(f".globl {KN}\n.p2align 8\n.type {KN},@function\n{KN}:")
    A("s_cmp_ge_u32 s2, 256\ns_cbranch_scc1 L_end")
    A.st(0)
    A("s_load_dwordx16 s[36:51], s[0:1], 0\ns_load_dwordx16 s[52:67], s[0:1], 64")
    A("v_lshrrev_b32 v1, 6, v0\nv_and_b32 v2, 63, v0")
    A(f"v_mov_b32 v{vSY}, {SYNC}\nv_mov_b32 v4, 0\nv_mov_b32 v5, 0")
    A("v_readfirstlane_b32 s3, v1")
    for i in range(5): A(f"ds_write_b64 v{vSY}, v[4:5] offset:{8*i}")
    A(f"s_and_b32 s{sX}, s2, 7\ns_lshr_b32 s{sJ}, s2, 3\ns_mov_b32 s{sBAR}, 0")
    A(f"s_and_b32 s{sDT}, s{sJ}, 7")
    A(f"s_cmp_lt_u32 s{sX}, 3\ns_cselect_b32 s83, 32, 24")
    A(f"s_cmp_lt_u32 s{sJ}, s83\ns_cselect_b32 s{sPH}, 0, 1")
    A(f"s_mul_i32 s{sNT}, s{sX}, 3\ns_min_u32 s68, s{sX}, 3\ns_add_u32 s{sNT}, s{sNT}, s68\ns_lshr_b32 s68, s{sJ}, 3\ns_add_u32 s{sNT}, s{sNT}, s68")
    A("s_cmp_eq_u32 s3, 6\ns_cbranch_scc1 L_lwave")
    A("s_cmp_ge_u32 s3, 4\ns_cbranch_scc1 L_cwave")
    if prio: A("s_setprio 1")
    A(f"s_lshl_b32 s{sLB}, s3, 15")
    A(f"s_lshl_b32 s84, s{sX}, 5\ns_add_u32 s84, s84, s{sJ}")
    A("s_lshl_b32 s85, s84, 3\ns_lshl_b32 s68, s3, 1\ns_add_u32 s85, s85, s68")
    A("s_mul_i32 s68, s85, 1280")
    A("v_lshlrev_b32 v14, 4, v2\nv_lshlrev_b32 v15, 2, v2\nv_add_u32 v15, 1024, v15")
    A("s_waitcnt lgkmcnt(0)")
    A.srd(28, pU, SZ_X)
    A(f"buffer_load_dwordx4 v[4:7], v14, s[28:31], s68 offen {xnt}\nbuffer_load_dword v12, v15, s[28:31], s68 offen {xnt}")
    A(f"buffer_load_dwordx4 v[8:11], v14, s[28:31], s68 offen offset:1280 {xnt}\nbuffer_load_dword v13, v15, s[28:31], s68 offen offset:1280 {xnt}")
    A(f"global_load_dwordx4 v[16:19], v14, s[{pGW}:{pGW+1}]\nglobal_load_dword v20, v15, s[{pGW}:{pGW+1}]")
    A.srd(24, pWS, FLSZ, FL)
    A("v_mov_b32 v21, 0\nbuffer_load_dword v21, v21, s[24:27], 0 offen sc1")
    A("s_barrier")
    w_setup(A, pW1, 3456, 64)
    A(f"s_add_u32 s{sM}, s{sLB}, {0x4000 if SH == 4 else 0}")
    A("s_waitcnt vmcnt(0)")
    A.S("x")
    X = (24, 34); GW = 44
    src = ((4,5,6,7,12), (8,9,10,11,13))
    for q in range(2):
        for i in range(5): A(f"v_lshlrev_b32 v{X[q]+2*i}, 16, v{src[q][i]}\nv_and_b32 v{X[q]+2*i+1}, 0xffff0000, v{src[q][i]}")
    for i, r in enumerate((16,17,18,19,20)): A(f"v_lshlrev_b32 v{GW+2*i}, 16, v{r}\nv_and_b32 v{GW+2*i+1}, 0xffff0000, v{r}")
    A(f"v_readfirstlane_b32 s{sTAG}, v21")
    A(f"v_readlane_b32 s68, v{X[0]}, 0\nv_readlane_b32 s70, v{X[1]}, 0")
    A(f"s_add_u32 s{sTAG}, s{sTAG}, 1\ns_mov_b32 s69, s68\ns_mov_b32 s71, s70")
    A(f"s_and_b32 s72, s3, 1\ns_lshl_b32 s72, s72, 7\ns_add_u32 s72, s72, s{sLB}\ns_add_u32 s72, s72, {STG}")
    A("v_add_u32 v22, s72, v14\nv_add_u32 v23, s72, v15")
    for q in range(2):
        D = 54 + 20*q; T = 64 + 20*q; c = 68 + 2*q
        for i in range(5): A(f"v_pk_add_f32 v[{D+2*i}:{D+2*i+1}], v[{X[q]+2*i}:{X[q]+2*i+1}], s[{c}:{c+1}] neg_lo:[0,1] neg_hi:[0,1]")
        for i in range(5): A(f"v_pk_mul_f32 v[{T+2*i}:{T+2*i+1}], v[{X[q]+2*i}:{X[q]+2*i+1}], v[{GW+2*i}:{GW+2*i+1}]")
    for q in range(2):
        D = 54 + 20*q; T = 64 + 20*q; S = 94 + 6*q
        A(f"v_pk_mul_f32 v[{S+2}:{S+3}], v[{D}:{D+1}], v[{D}:{D+1}]\nv_pk_add_f32 v[{S}:{S+1}], v[{D}:{D+1}], v[{D+2}:{D+3}]")
        for i in range(5): A(f"v_cvt_pk_bf16_f32 v{T+2*i}, v{T+2*i}, v{T+2*i+1}")
        for i in range(1, 5):
            A(f"v_pk_fma_f32 v[{S+2}:{S+3}], v[{D+2*i}:{D+2*i+1}], v[{D+2*i}:{D+2*i+1}], v[{S+2}:{S+3}]")
            if i >= 2: A(f"v_pk_add_f32 v[{S}:{S+1}], v[{S}:{S+1}], v[{D+2*i}:{D+2*i+1}]")
        for i in range(5): A(f"v_and_b32 v{T+2*i+1}, 0xffff0000, v{T+2*i}\nv_lshlrev_b32 v{T+2*i}, 16, v{T+2*i}")
        A(f"v_pk_add_f32 v[{S+4}:{S+5}], v[{T}:{T+1}], v[{T+2}:{T+3}]\nv_pk_add_f32 v[{T+4}:{T+5}], v[{T+4}:{T+5}], v[{T+6}:{T+7}]")
        A(f"v_pk_add_f32 v[{S+4}:{S+5}], v[{S+4}:{S+5}], v[{T+8}:{T+9}]\nv_pk_add_f32 v[{S+4}:{S+5}], v[{S+4}:{S+5}], v[{T+4}:{T+5}]")
    for q in range(2):
        for n in range(3): A(f"v_add_f32 v{106+2*n+q}, v{94+6*q+2*n}, v{95+6*q+2*n}")
    for n in range(3): A(f"v_permlane32_swap_b32 v{106+2*n}, v{107+2*n}")
    for n in range(3): A(f"v_add_f32 v{106+2*n}, v{106+2*n}, v{107+2*n}")
    for ctl in ("quad_perm:[1,0,3,2]", "quad_perm:[2,3,0,1]", "row_half_mirror", "row_mirror"):
        for n in range(3): A(f"v_add_f32_dpp v{106+2*n}, v{106+2*n}, v{106+2*n} {ctl} row_mask:0xf bank_mask:0xf")
    for n in range(3): A(f"v_mov_b32 v{107+2*n}, v{106+2*n}")
    A("v_mov_b32 v112, s68\ns_mov_b32 exec_lo, 0\nv_mov_b32 v112, s70\ns_mov_b32 exec_lo, -1")
    for n in range(3): A(f"v_permlane16_swap_b32 v{106+2*n}, v{107+2*n}")
    for n in range(3): A(f"v_add_f32 v{106+2*n}, v{106+2*n}, v{107+2*n}")
    inv = f32bits(1/640)
    A(f"v_mul_f32 v106, {inv}, v106\nv_mul_f32 v108, {inv}, v108")
    A("v_fma_f32 v108, -v106, v106, v108\nv_add_f32 v106, v106, v112\nv_max_f32 v108, 0, v108")
    A.bfr(110, 110); A.bfr(108, 108); A.bfr(106, 106)
    A(f"v_add_f32 v108, {f32bits(1e-5)}, v108\nv_mul_f32 v110, {f32bits(-L2E)}, v110")
    A.bfr(108, 108)
    A("v_exp_f32 v110, v110\nv_sqrt_f32 v108, v108\nv_readlane_b32 s68, v106, 0\nv_readlane_b32 s70, v106, 32")
    A("v_add_f32 v110, 1.0, v110")
    A.bfr(108, 108)
    A("v_rcp_f32 v110, v110\nv_rcp_f32 v108, v108\ns_mov_b32 s69, s68\ns_mov_b32 s71, s70")
    for q in range(2):
        D = 54 + 20*q; c = 68 + 2*q
        for i in range(5): A(f"v_pk_add_f32 v[{D+2*i}:{D+2*i+1}], v[{X[q]+2*i}:{X[q]+2*i+1}], s[{c}:{c+1}] neg_lo:[0,1] neg_hi:[0,1]")
    A("v_readlane_b32 s68, v108, 0\nv_readlane_b32 s70, v108, 32")
    A.bfr(112, 110)
    for q in range(2):
        D = 54 + 20*q
        for i in range(5): A(f"v_cvt_pk_bf16_f32 v{D+2*i}, v{D+2*i}, v{D+2*i+1}")
    A("s_mov_b32 s69, s68\ns_mov_b32 s71, s70\nv_sub_f32 v113, 1.0, v112")
    for q in range(2):
        D = 54 + 20*q
        for i in range(5): A(f"v_and_b32 v{D+2*i+1}, 0xffff0000, v{D+2*i}\nv_lshlrev_b32 v{D+2*i}, 16, v{D+2*i}")
    A.bfr(113, 113)
    for q in range(2):
        D = 54 + 20*q; c = 68 + 2*q
        for i in range(5): A(f"v_pk_mul_f32 v[{D+2*i}:{D+2*i+1}], v[{D+2*i}:{D+2*i+1}], s[{c}:{c+1}]")
    for q in range(2):
        D = 54 + 20*q; H = 24 + 6*q
        for i in range(5): A(f"v_cvt_pk_bf16_f32 v{H+i}, v{D+2*i}, v{D+2*i+1}")
        A(f"ds_write_b128 v22, v[{H}:{H+3}] offset:{1344*q}\nds_write_b32 v23, v{H+4} offset:{1344*q}")
    A.S("ln")
    A.arrive(0, 36)
    A("v_lshrrev_b32 v37, 4, v2\nv_bfe_u32 v38, v2, 2, 2\nv_and_b32 v39, 3, v2\nv_and_b32 v40, 15, v2")
    A(f"v_lshrrev_b32 v41, 1, v38\nv_mul_u32_u24 v41, {32768+128}, v41\nv_and_b32 v42, 1, v38\nv_mul_u32_u24 v42, 1344, v42")
    A(f"s_lshl_b32 s72, s3, 7\ns_add_u32 s72, s72, {STG}\nv_add3_u32 v41, v41, v42, s72\nv_lshl_add_u32 v41, v37, 5, v41\nv_lshl_add_u32 v41, v39, 3, v41")
    A("v_add_u32 v42, 0x10000, v41")
    A("s_lshl_b32 s72, s3, 12\nv_lshlrev_b32 v45, 10, v37\nv_lshl_add_u32 v45, v40, 4, v45\nv_add_u32 v45, s72, v45")
    A("s_lshr_b32 s72, s84, 2\ns_mul_i32 s72, s72, 40960\ns_and_b32 s73, s84, 3\ns_lshl_b32 s73, s73, 8\ns_add_u32 s72, s72, s73")
    A.srd(20, pWS, 0x500000, HU)
    A.srd(32, pWS, 2048*8, GATE)
    A("v_lshrrev_b32 v46, 5, v2\nv_lshlrev_b32 v46, 3, v46\ns_lshl_b32 s73, s85, 3")
    A("s_mov_b32 exec_lo, 1\ns_mov_b32 exec_hi, 1\nbuffer_store_dwordx2 v[112:113], v46, s[32:35], s73 offen sc1\ns_mov_b64 exec, -1")
    A(f"s_add_u32 s{sBAR}, s{sBAR}, 4")
    A.waitge(0, f"s{sBAR}", 36)
    for i in range(3):
        A(f"ds_read_b64_tr_b16 v[{48+4*i}:{49+4*i}], v41 offset:{i*512}\nds_read_b64_tr_b16 v[{50+4*i}:{51+4*i}], v42 offset:{i*512}")
    for i in range(3):
        if i == 2: A("s_cmp_ge_u32 s3, 2\ns_cbranch_scc1 L_no3")
        A(f"s_waitcnt lgkmcnt({4-2*i})\nbuffer_store_dwordx4 v[{48+4*i}:{51+4*i}], v45, s[20:23], s72 offen sc1")
        if i < 2: A("s_add_u32 s72, s72, 16384")
    A("L_no3:\ns_waitcnt lgkmcnt(0)")
    A.S("st")
    A.arrive(4, 36)
    A("s_waitcnt vmcnt(0)")
    A.S("ack1")
    A.gbar(36)
    A.S("bar1")
    A("s_cmp_lg_u32 s3, 0\ns_cbranch_scc1 L_noflag1")
    A.waitge(8, 1, 36)
    A(f"s_lshr_b32 s72, s84, 2\ns_lshl_b32 s72, s72, 7\ns_and_b32 s73, s84, 3\ns_lshl_b32 s73, s73, 2\ns_add_u32 s72, s72, s73\ns_add_u32 s72, s72, {F1}")
    A.setflag("s72", 36)
    A("L_noflag1:")
    A(f"v_lshlrev_b32 v{vA0}, 4, v2\nv_add_u32 v{vA1}, 4096, v{vA0}\nv_mov_b32 v{E+23}, 0")
    A(f"v_lshrrev_b32 v{t0}, 4, v2\nv_bfe_u32 v{t1}, v2, 2, 2")
    A(f"v_lshlrev_b32 v{vT}, 10, v{t0}\nv_lshl_add_u32 v{vT}, v{t1}, 7, v{vT}")
    A(f"v_and_b32 v{t0}, 1, v{t0}\nv_lshlrev_b32 v{t0}, 1, v{t0}\nv_lshrrev_b32 v{t1}, 1, v{t1}\nv_or_b32 v{t0}, v{t0}, v{t1}")
    A(f"v_lshl_add_u32 v{vT}, v{t0}, 5, v{vT}\nv_and_b32 v{t1}, 3, v2\nv_lshl_add_u32 v{vT}, v{t1}, 3, v{vT}\nv_add_u32 v{t0}, s{sLB}, v{vT}")
    for a in range(4):
        A(f"s_add_u32 s68, s3, {a}\ns_and_b32 s68, s68, 3\ns_lshl_b32 s68, s68, 5\nv_xor_b32 v{vT+a}, s68, v{t0}")
    A(f"s_mul_i32 s68, s{sDT}, 5120")
    A.srd(16, pWS, 0x500000, "s68")
    A(f"s_cmp_lg_u32 s{sPH}, 0\ns_cbranch_scc1 L_freecu")
    A(f"v_lshrrev_b32 v{E}, 4, v2\nv_lshlrev_b32 v{E}, 3, v{E}\ns_lshl_b32 s68, s3, 5\ns_lshl_b32 s69, s{sNT}, 7\ns_add_u32 s68, s68, s69\nv_add_u32 v{E}, s68, v{E}")
    A(f"global_load_dwordx2 v[{E}:{E+1}], v{E}, s[{pB1}:{pB1+1}]")
    A(f"s_mul_i32 s{sA}, s3, 40960\ns_mov_b32 s{sAstep}, {4*40960}\ns_mov_b32 s{sAend}, {64*40960}\ns_mov_b32 s{sAsz}, 0x500000\ns_mov_b32 s{sN}, 1")
    def act_touch_addr(stride):
        A(f"s_lshr_b32 s68, s{sJ}, 2\ns_lshl_b32 s68, s68, 6\nv_add_u32 v44, s68, v2\ns_mov_b32 s68, {stride}")
        for r in range(5):
            A(f"v_mul_u32_u24 v45, 1639, v44\nv_lshrrev_b32 v45, 16, v45\nv_mul_u32_u24 v46, 40, v45\nv_sub_u32 v46, v44, v46")
            A(f"v_mul_lo_u32 v45, v45, s68\nv_lshl_add_u32 v{48+r}, v46, 7, v45\nv_add_u32 v44, 512, v44")
    def act_touch():
        for r in range(5): A(f"buffer_load_dword v231, v{48+r}, s[16:19], 0 offen sc1")
    def waitF1(inchan=False):
        l1 = A.lab("f"); l2 = A.lab("f")
        A(f"s_cmp_lg_u32 s3, 0\ns_cbranch_scc1 {l1}")
        A(f"v_lshlrev_b32 v36, 7, v2\ns_mov_b32 s51, {F1}")
        if acttouch: act_touch_addr(81920)
        if latepoll and not inchan: A.waitge(6, 1, 40, sleep=1)
        A.poll4(36, "s51", 40, sleep=psleep)
        if acttouch: act_touch()
        A(f"v_mov_b32 v36, s{sTAG}\nds_write_b32 v{vSY}, v36 offset:12")
        A.arrive(1, 36)
        A(f"s_cmp_lg_u32 s2, 0\ns_cbranch_scc1 {l2}")
        A.setflag("0", 36)
        A(f"s_branch {l2}\n{l1}:")
        A.waitge(1, 1, 36, sleep=1)
        A(f"ds_read_b32 v36, v{vSY} offset:12\ns_waitcnt lgkmcnt(0)\nv_readfirstlane_b32 s{sTAG}, v36")
        A(f"{l2}:")
    A(f"s_mul_i32 s68, s{sDT}, 5120\ns_add_u32 s68, s68, {GO}")
    A.srd(28, pWS, 54*40960, "s68")
    A(f"s_lshl_b32 s84, s{sNT}, 1\ns_lshr_b32 s69, s3, 1\ns_add_u32 s84, s84, s69\ns_mul_i32 s84, s84, 40960\ns_and_b32 s69, s3, 1\ns_lshl_b32 s69, s69, 9\ns_add_u32 s84, s84, s69\ns_add_u32 s85, s84, 4096")
    A(f"v_bfe_u32 v{E+2}, v2, 4, 1\nv_lshlrev_b32 v{E+2}, 10, v{E+2}\nv_lshrrev_b32 v11, 5, v2\nv_lshl_add_u32 v{E+2}, v11, 8, v{E+2}\nv_and_b32 v11, 15, v2\nv_lshl_add_u32 v{E+2}, v11, 4, v{E+2}")
    A(f"s_lshl_b32 s50, s{sDT}, 5\ns_add_u32 s50, s50, s{sNT}\ns_lshl_b32 s50, s50, 7\ns_lshl_b32 s69, s3, 2\ns_add_u32 s50, s50, s69\ns_add_u32 s50, s50, {F2}")
    A("L_waitf1:")
    for i in range(80): A(f"v_mov_b32 v{ACC0+i}, 0")
    waitF1()
    A.S("poll1")
    A.waitge(6, 1, 36)
    A.S("seen1")
    A(f"s_cmp_lg_u32 s{sPH}, 0\ns_cbranch_scc1 L_chan_ret")
    A("L_gemm:")
    A(f"s_mov_b32 s87, 0\ns_lshl_b32 s88, s{sW8}, 1\ns_sub_u32 s89, s{sWstep}, s88\ns_xor_b32 s89, s89, s88")
    if 'a' in dbg: A(f"s_mov_b32 s{sAsz}, 0")
    if 's' in dbg: A(f"s_mov_b32 s{sAstep}, 0")
    if 'w' in dbg: A(f"s_mov_b32 s{sWend}, 0")
    def act_addr():
        A(f"s_cmp_lt_u32 s{sA}, s{sAend}\ns_cselect_b32 s18, s{sAsz}, 0")
    def act(stage, db):
        r = ACT0 + stage*20 + db*4
        if db < 4: A(f"buffer_load_dwordx4 v[{r}:{r+3}], v{vA0}, s[16:19], s{sA} offen offset:{db*1024} {actmod}")
        else: A(f"buffer_load_dwordx4 v[{r}:{r+3}], v{vA1}, s[16:19], s{sA} offen {actmod}\ns_add_u32 s{sA}, s{sA}, s{sAstep}")
    def trr(buf, slot):
        for a in range(4):
            r = WF0 + buf*16 + a*4
            A(f"ds_read_b64_tr_b16 v[{r}:{r+1}], v{vT+a} offset:{slot*4096}\nds_read_b64_tr_b16 v[{r+2}:{r+3}], v{vT+a} offset:{slot*4096+512}")
    for st in range(LA):
        act_addr()
        for db in range(5): act(st, db)
    A(f"s_mov_b32 s{sIt}, s{sPH}")
    trr(0, 0)
    def mfmas(u, db):
        b = ACT0 + u*20 + db*4
        for a in range(4):
            c = ACC0 + (a*5+db)*4; w = WF0 + (u%2)*16 + a*4
            if 'm' not in dbg or a == 0: A(f"v_mfma_f32_16x16x32_bf16 v[{c}:{c+3}], v[{w}:{w+3}], v[{b}:{b+3}], v[{c}:{c+3}]")
    A(".p2align 3\nL_loop:")
    for u in range(4):
        if u == 3:
            k = A.lab("c")
            A(f"s_cmp_eq_u32 s{sN}, 0\ns_cbranch_scc1 {k}")
            A.waitge(9, f"s{sN}", t0)
            A(f"s_mov_b32 s{sN}, 0\n{k}:")
        A(f"s_waitcnt vmcnt({5*(LA-1)})")
        if u == 3:
            for a in range(4): A(f"v_xor_b32 v{vT+a}, 0x4000, v{vT+a}")
        trr((u+1) % 2, (u+1) % 4)
        A("s_waitcnt lgkmcnt(8)")
        def half():
            sk = A.lab("s")
            A(f"s_cmp_lt_u32 s{sW}, s{sWend}\ns_cbranch_scc0 {sk}")
            A(f"s_add_u32 m0, s{sLB}, s87\ns_add_u32 s81, s{sW}, s{sW8}\nbuffer_load_dwordx4 v{vW0}, s[12:15], s{sW} offen {DNT} lds")
            A(f"s_add_u32 m0, m0, 1024\ns_add_u32 s{sW}, s{sW}, s88\nbuffer_load_dwordx4 v{vW1}, s[12:15], s81 offen {DNT} lds")
            A(f"s_xor_b32 s88, s88, s89\ns_add_u32 s87, s87, 2048\n{sk}:")
        for _ in range(pat[u]): half()
        act_addr()
        if actpos == 'top':
            for db in range(5): act((u+LA) % 4, db)
        for db in range(5):
            mfmas(u, db)
            if actpos == 'grp': act((u+LA) % 4, db)
        for ph, n in ((0, 16), (1, 14)):
            last = n - LA - 1
            if last % 4 == u and u != 3: A(f"s_cmp_eq_u32 s{sIt}, {last - u + ph}\ns_cbranch_scc1 L_drain{ph}")
    if stamp:
        k = A.lab("r"); A(f"s_cmp_lg_u32 s{sIt}, 0\ns_cbranch_scc1 {k}"); A.S("trip1"); A(f"{k}:")
        k = A.lab("r"); A(f"s_cmp_lg_u32 s{sIt}, 4\ns_cbranch_scc1 {k}"); A.S("trip2"); A(f"{k}:")
    for ph, n in ((0, 16), (1, 14)):
        last = n - LA - 1
        if last % 4 == 3: A(f"s_cmp_eq_u32 s{sIt}, {last - 3 + ph}\ns_cbranch_scc1 L_drain{ph}")
    A(f"s_add_u32 s{sIt}, s{sIt}, 4\ns_branch L_loop")
    def xw(db):
        for a in range(1, 4):
            c = ACC0 + (a*5+db)*4
            A(f"ds_write_b128 v{t0}, v[{c}:{c+3}] offset:{16384+((a-1)*5+db)*1024}")
    def mf(u, a, db):
        b = ACT0 + u*20 + db*4; c = ACC0 + (a*5+db)*4; w = WF0 + (u%2)*16 + a*4
        A(f"v_mfma_f32_16x16x32_bf16 v[{c}:{c+3}], v[{w}:{w+3}], v[{b}:{b+3}], v[{c}:{c+3}]")
    def drain(seq, ph):
        for n, u in enumerate(seq[:-1]):
            if ph == 1 and n == len(seq)-2:
                A.S("loop2")
                A.waitge(7, 2, t0, sleep=1)
                A.S("f3")
                A(f"s_mul_i32 s68, s{sDT}, {80*4096}\ns_lshl_b32 s85, s84, 1\ns_add_u32 s68, s68, s85")
                for db in range(5):
                    A(f"buffer_load_dwordx2 v[{E+10+2*db}:{E+11+2*db}], v{E+23}, s[28:31], s68 offen sc1")
                    if db < 4: A("s_add_u32 s68, s68, 65536")
            A(f"s_waitcnt vmcnt({5*(LA-1-n)})")
            if u == 3:
                for a in range(4): A(f"v_xor_b32 v{vT+a}, 0x4000, v{vT+a}")
            trr((u+1) % 2, (u+1) % 4)
            A("s_waitcnt lgkmcnt(8)")
            for db in range(5): mfmas(u, db)
        u = seq[-1]
        A(f"v_add_u32 v{t0}, s{sLB}, v{vA0}")
        A("s_waitcnt vmcnt(0) lgkmcnt(0)" if ph == 0 else "s_waitcnt lgkmcnt(0)")
        for db in range(5):
            for a in (1, 2, 3): mf(u, a, db)
            if db >= 2: xw(db-2)
        for db in range(5): mf(u, 0, db)
        xw(3); xw(4)
    A("L_drain0:")
    A.S("dr1")
    A.arrive(5, t0)
    drain([t % 4 for t in range(16-LA, 16)], 0)
    A("s_branch L_drained")
    A("L_drain1:")
    A.S("dr2")
    drain([t % 4 for t in range(14-LA, 14)], 1)
    A("L_drained:")
    A.arrive(0, 4)
    for a in range(1, 4):
        A(f"s_sub_u32 s68, s3, {a}\ns_and_b32 s68, s68, 3\ns_lshl_b32 s68, s68, 15\nv_add_u32 v{4+a}, s68, v{vA0}")
    A(f"s_add_u32 s{sBAR}, s{sBAR}, 4")
    A(f"s_cmp_lg_u32 s{sPH}, 0\ns_cbranch_scc1 L_end2")
    A.S("loop1")
    def w2_setup():
        A(f"s_lshl_b32 s{sNT}, s{sX}, 2\ns_lshr_b32 s68, s{sJ}, 3\ns_add_u32 s{sNT}, s{sNT}, s68")
        w_setup(A, pW2, 4096, 54)
        A(f"s_mov_b32 s{sM}, s{sLB}")
    A("s_branch L_xchg")
    A("L_end2:")
    Y = 12
    A("s_waitcnt vmcnt(0)")
    for db in range(5):
        a = E+10+2*db; z = Y + 4*db
        A(f"v_lshlrev_b32 v{z}, 16, v{a}\nv_and_b32 v{z+1}, 0xffff0000, v{a}\nv_lshlrev_b32 v{z+2}, 16, v{a+1}\nv_and_b32 v{z+3}, 0xffff0000, v{a+1}")
    for db in range(5):
        for r in range(4): A(f"v_mul_f32 v{Y+4*db+r}, v{Y+4*db+r}, v{E+2+2*r}")
    for i in range(10): A(f"v_cvt_pk_bf16_f32 v{Y+2*i}, v{Y+2*i}, v{Y+2*i+1}")
    for i in range(10): A(f"v_and_b32 v{Y+2*i+1}, 0xffff0000, v{Y+2*i}\nv_lshlrev_b32 v{Y+2*i}, 16, v{Y+2*i}")
    A("L_xchg:")
    A.waitge(0, f"s{sBAR}", 4)
    A.S0("xb")
    for a in range(1, 4):
        for db in range(5):
            r = ACT0 + ((a-1)*5+db)*4
            A(f"ds_read_b128 v[{r}:{r+3}], v{4+a} offset:{16384+((a-1)*5+db)*1024}")
    for a in range(1, 4):
        A(f"s_waitcnt lgkmcnt({(3-a)*5})")
        for db in range(5):
            r = ACT0 + ((a-1)*5+db)*4; c = ACC0 + db*4
            A(f"v_pk_add_f32 v[{c}:{c+1}], v[{c}:{c+1}], v[{r}:{r+1}]\nv_pk_add_f32 v[{c+2}:{c+3}], v[{c+2}:{c+3}], v[{r+2}:{r+3}]")
    b = 8
    A(f"v_lshlrev_b32 v{b}, 16, v{E}\nv_and_b32 v{b+1}, 0xffff0000, v{E}\nv_lshlrev_b32 v{b+2}, 16, v{E+1}\nv_and_b32 v{b+3}, 0xffff0000, v{E+1}")
    R = 36
    if fastr:
        for db in range(5):
            c = ACC0 + db*4; t = R + db*4
            A(f"v_pk_add_f32 v[{t}:{t+1}], v[{c}:{c+1}], v[{b}:{b+1}]\nv_pk_add_f32 v[{t+2}:{t+3}], v[{c+2}:{c+3}], v[{b+2}:{b+3}]")
    else:
        for db in range(5):
            c = ACC0 + db*4; t = R + db*4
            A(f"v_cvt_pk_bf16_f32 v{t}, v{c}, v{c+1}\nv_cvt_pk_bf16_f32 v{t+2}, v{c+2}, v{c+3}")
        for db in range(5):
            t = R + db*4
            A(f"v_and_b32 v{t+1}, 0xffff0000, v{t}\nv_lshlrev_b32 v{t}, 16, v{t}\nv_and_b32 v{t+3}, 0xffff0000, v{t+2}\nv_lshlrev_b32 v{t+2}, 16, v{t+2}")
        for db in range(5):
            t = R + db*4
            A(f"v_pk_add_f32 v[{t}:{t+1}], v[{t}:{t+1}], v[{b}:{b+1}]\nv_pk_add_f32 v[{t+2}:{t+3}], v[{t+2}:{t+3}], v[{b+2}:{b+3}]")
        for db in range(5):
            t = R + db*4
            A(f"v_cvt_pk_bf16_f32 v{t}, v{t}, v{t+1}\nv_cvt_pk_bf16_f32 v{t+2}, v{t+2}, v{t+3}")
        for db in range(5):
            t = R + db*4
            A(f"v_and_b32 v{t+1}, 0xffff0000, v{t}\nv_lshlrev_b32 v{t}, 16, v{t}\nv_and_b32 v{t+3}, 0xffff0000, v{t+2}\nv_lshlrev_b32 v{t+2}, 16, v{t+2}")
    A(f"s_cmp_lg_u32 s{sPH}, 0\ns_cbranch_scc1 L_final")
    A.S("xchg1")
    if b2when == 'x': A.arrive(5, 4)
    k0 = math.sqrt(2/math.pi); k1 = 0.044715
    c0 = -2*k0*L2E; c1 = c0*k1
    A(f"s_mov_b32 s68, {f32bits(c1)}\ns_mov_b32 s69, s68\nv_mov_b32 v6, {f32bits(c0)}\nv_mov_b32 v7, v6")
    Z = 56
    for i in range(10): A(f"v_pk_mul_f32 v[{Z+2*i}:{Z+2*i+1}], v[{R+2*i}:{R+2*i+1}], v[{R+2*i}:{R+2*i+1}]")
    for i in range(10): A(f"v_pk_fma_f32 v[{Z+2*i}:{Z+2*i+1}], v[{Z+2*i}:{Z+2*i+1}], s[68:69], v[6:7]")
    for i in range(10): A(f"v_pk_mul_f32 v[{Z+2*i}:{Z+2*i+1}], v[{Z+2*i}:{Z+2*i+1}], v[{R+2*i}:{R+2*i+1}]")
    for i in range(20): A(f"v_exp_f32 v{Z+i}, v{Z+i}")
    for i in range(20): A(f"v_add_f32 v{Z+i}, 1.0, v{Z+i}")
    for i in range(20): A(f"v_rcp_f32 v{Z+i}, v{Z+i}")
    for i in range(10): A(f"v_pk_mul_f32 v[{Z+2*i}:{Z+2*i+1}], v[{Z+2*i}:{Z+2*i+1}], v[{R+2*i}:{R+2*i+1}]")
    P = 12
    for i in range(10): A(f"v_cvt_pk_bf16_f32 v{P+i}, v{Z+2*i}, v{Z+2*i+1}")
    for p in range(3): A(f"v_permlane16_swap_b32 v{P+4*p}, v{P+4*p+2}\nv_permlane16_swap_b32 v{P+4*p+1}, v{P+4*p+3}")
    A(f"buffer_store_dwordx4 v[{P}:{P+3}], v{E+2}, s[28:31], s84 offen sc1\nbuffer_store_dwordx4 v[{P+4}:{P+7}], v{E+2}, s[28:31], s84 offen offset:2048 sc1")
    A(f"s_mov_b32 exec_lo, 0xffff\ns_mov_b32 exec_hi, 0xffff\nbuffer_store_dwordx4 v[{P+8}:{P+11}], v{E+2}, s[28:31], s85 offen sc1\ns_mov_b64 exec, -1")
    A.S("gst")
    if b2when == 'st': A.arrive(5, 4)
    w2_setup()
    A("s_waitcnt vmcnt(0)")
    if wflag: A.setflag("s50", 4)
    else:
        A.gbar(4)
        A("s_cmp_lg_u32 s3, 0\ns_cbranch_scc1 L_noflag2")
        A(f"s_mov_b64 exec, 0xf\nv_mov_b32 v4, s{sTAG}\nv_lshlrev_b32 v5, 2, v2\nbuffer_store_dword v4, v5, s[24:27], s50 offen sc1\ns_mov_b64 exec, -1")
        A("L_noflag2:")
    A.S("flag2")
    if b2when == 'ack': A.arrive(5, 4)
    A("L_pre2:")
    A(f"s_mov_b32 s{sPH}, 1\ns_add_u32 s{sM}, s{sLB}, {0x4000 if SH == 4 else 0}")
    for a in range(4): A(f"v_and_b32 v{vT+a}, 0xffffbfff, v{vT+a}")
    A(f"s_mul_i32 s68, s{sDT}, 5120\ns_add_u32 s68, s68, {GO}")
    A.srd(16, pWS, 54*40960, "s68")
    A(f"s_mul_i32 s{sA}, s3, 40960\ns_mov_b32 s{sAstep}, {4*40960}\ns_mov_b32 s{sAend}, {54*40960}\ns_mov_b32 s{sAsz}, {54*40960}\ns_mov_b32 s{sN}, 2")
    A(f"s_lshl_b32 s84, s{sNT}, 6\ns_lshl_b32 s68, s3, 4\ns_add_u32 s84, s84, s68")
    A.srd(28, pWS, SZ_X, AT); A.srd(32, pWS, 2048*8, GATE)
    A(f"v_lshrrev_b32 v{E+20}, 4, v2\nv_and_b32 v{E+21}, 15, v2")
    A(f"s_lshl_b32 s85, s84, 1\nv_lshl_add_u32 v{E}, v{E+20}, 3, s85")
    A(f"v_lshlrev_b32 v{E+22}, 5, v{E+20}\ns_lshl_b32 s68, s84, 3")
    A(f"global_load_dwordx2 v[{E}:{E+1}], v{E}, s[{pB2}:{pB2+1}]")
    A(f"buffer_load_dwordx4 v[{E+2}:{E+5}], v{E+22}, s[32:35], s68 offen sc1\nbuffer_load_dwordx4 v[{E+6}:{E+9}], v{E+22}, s[32:35], s68 offen offset:16 sc1")
    A(f"v_lshlrev_b32 v{E+23}, 12, v{E+21}\nv_lshl_add_u32 v{E+23}, v{E+20}, 3, v{E+23}")
    A.srd(32, pOUT, SZ_X)
    A(f"v_mul_u32_u24 v238, 704, v{E+20}\nv_lshl_add_u32 v238, v{E+21}, 1, v238\nv_add_u32 v238, s{sLB}, v238")
    A(f"s_mul_i32 s82, s84, 1280\ns_mul_i32 s69, s{sDT}, 160\ns_add_u32 s82, s82, s69")
    for i in range(3):
        c, row, col = 232+2*i, 233+2*i, 4
        A(f"v_add_u32 v{c}, {64*i}, v2\nv_mul_u32_u24 v{row}, 205, v{c}\nv_lshrrev_b32 v{row}, 11, v{row}")
        A(f"v_mul_u32_u24 v{col}, 10, v{row}\nv_sub_u32 v{col}, v{c}, v{col}\nv_lshlrev_b32 v{col}, 4, v{col}")
        A(f"v_mul_u32_u24 v{c}, 176, v{row}\nv_add3_u32 v{c}, v{c}, v{col}, s{sLB}")
        A(f"v_mul_u32_u24 v{row}, 1280, v{row}\nv_add_u32 v{row}, v{row}, v{col}")
    for i in range(80): A(f"v_mov_b32 v{ACC0+i}, 0")
    A("s_cmp_lg_u32 s3, 0\ns_cbranch_scc1 L_w2")
    A(f"v_lshlrev_b32 v36, 7, v2")
    A(f"s_lshl_b32 s50, s{sDT}, 12\ns_add_u32 s50, s50, {F2}")
    if acttouch: act_touch_addr(40960)
    A("s_mov_b64 exec, 0x7ffffff")
    A.poll4(36, "s50", 40, sleep=psleep)
    if acttouch: act_touch()
    A.S("poll2")
    A.arrive(2, 36)
    A("L_w2:")
    A.waitge(2, 2, 36, sleep=1)
    A.S("seen2")
    A("s_branch L_gemm")
    A("L_final:")
    A.S("xchg2")
    for db in range(5):
        for r in range(4): A(f"v_mul_f32 v{R+4*db+r}, v{R+4*db+r}, v{E+3+2*r}")
    for i in range(10): A(f"v_cvt_pk_bf16_f32 v{R+2*i}, v{R+2*i}, v{R+2*i+1}")
    for i in range(10): A(f"v_and_b32 v{R+2*i+1}, 0xffff0000, v{R+2*i}\nv_lshlrev_b32 v{R+2*i}, 16, v{R+2*i}")
    for i in range(10): A(f"v_pk_add_f32 v[{R+2*i}:{R+2*i+1}], v[{R+2*i}:{R+2*i+1}], v[{Y+2*i}:{Y+2*i+1}]")
    for db in range(5):
        t = R + 4*db
        A(f"v_cvt_pk_bf16_f32 v{t}, v{t}, v{t+1}\nv_cvt_pk_bf16_f32 v{t+1}, v{t+2}, v{t+3}")
        A(f"ds_write_b16 v238, v{t} offset:{32*db}\nds_write_b16_d16_hi v238, v{t} offset:{32*db+176}")
        A(f"ds_write_b16 v238, v{t+1} offset:{32*db+352}\nds_write_b16_d16_hi v238, v{t+1} offset:{32*db+528}")
    A("ds_read_b128 v[96:99], v232\nds_read_b128 v[100:103], v234\nds_read_b128 v[104:107], v236")
    A("s_waitcnt lgkmcnt(2)\nbuffer_store_dwordx4 v[96:99], v233, s[32:35], s82 offen")
    A("s_waitcnt lgkmcnt(1)\nbuffer_store_dwordx4 v[100:103], v235, s[32:35], s82 offen")
    A("s_waitcnt lgkmcnt(0)\ns_mov_b32 exec_hi, 0\nbuffer_store_dwordx4 v[104:107], v237, s[32:35], s82 offen")
    A.st_end()
    A("s_endpgm")
    A("L_freecu:")
    A.arrive(5, 36)
    w2_setup()
    A(f"s_lshl_b32 s68, s{sX}, 3\ns_add_u32 s68, s68, s{sJ}\ns_sub_u32 s68, s68, 48")
    A(f"s_cmp_ge_u32 s68, 32\ns_cbranch_scc1 L_waitf1")
    A(f"s_lshl_b32 s22, s68, 2\ns_add_u32 s22, s22, s3\ns_add_u32 s22, s22, 512")
    A(f"s_add_u32 s23, s{sLB}, 16384\ns_setprio 0\ns_mov_b32 s0, 1\ns_branch L_chan")
    A("L_chan_ret:")
    if prio: A("s_setprio 1")
    A.arrive(5, 36)
    A("s_branch L_pre2")
    A("L_lwave:")
    A("s_waitcnt lgkmcnt(0)")
    A.srd(24, pWS, FLSZ, FL)
    A.srd(28, pU, SZ_X)
    A(f"s_lshl_b32 s84, s{sX}, 2\ns_lshr_b32 s68, s{sJ}, 3\ns_add_u32 s84, s84, s68")
    A(f"s_mul_i32 s70, s84, {64*1280}\ns_mul_i32 s68, s{sDT}, 160\ns_add_u32 s70, s70, s68")
    A("v_mul_u32_u24 v4, 205, v2\nv_lshrrev_b32 v4, 11, v4\nv_mul_u32_u24 v5, 10, v4\nv_sub_u32 v5, v2, v5\nv_mul_u32_u24 v4, 1280, v4\nv_lshl_add_u32 v4, v5, 4, v4")
    A("v_mov_b32 v6, 1120")
    for i in range(10):
        A(f"s_mov_b32 m0, {1024*i}\ns_nop 0\nbuffer_load_dwordx4 v4, s[28:31], s70 offen {xnt} lds")
        if i < 9: A(f"v_add_u32 v5, 4, v5\nv_cmp_le_u32 vcc, 10, v5\nv_add_u32 v4, {6*1280+64}, v4\nv_cndmask_b32 v7, 0, v6, vcc\nv_add_u32 v4, v4, v7\nv_cndmask_b32_e64 v7, 0, 10, vcc\nv_sub_u32 v5, v5, v7")
    w_setup(A, pW1, 3456, 64, loader=True)
    A("s_barrier")
    def lsteps(first_slot, n):
        l = A.lab("l")
        A(f"s_mov_b32 s{sM}, {first_slot*4096}\ns_mov_b32 s{sIt}, 0\ns_mov_b32 s71, s{sW}\n{l}:")
        A(f"s_mul_i32 s70, s{sIt}, s{sWstep}\ns_add_u32 s{sW}, s71, s70")
        for q in range(16):
            A(f"s_add_u32 m0, s{sM}, {(q>>2)*32768 + (q&3)*1024}")
            if q == 0: A("s_nop 0")
            elif q == 1: A(f"s_add_u32 s81, s{sW}, s{sW8}")
            else: A(f"s_add_u32 s81, s81, s{sW8}")
            A(f"buffer_load_dwordx4 v{vW1 if q%2 else vW0}, s[12:15], s{81 if q else sW} offen {dnt} lds")
        A(f"s_add_u32 s{sM}, s{sM}, 4096\ns_add_u32 s{sIt}, s{sIt}, 1\ns_cmp_lt_u32 s{sIt}, {n}\ns_cbranch_scc1 {l}")
        A(f"s_mul_i32 s70, s{sWstep}, {n}\ns_add_u32 s{sW}, s71, s70")
    def wtouch(stride, nrows, tnt=""):
        q = nrows // 8
        A(f"s_and_b32 s68, s{sJ}, 7\ns_mul_i32 s68, s68, {q*stride}\ns_add_u32 s68, s68, s{sW}\nv_mul_u32_u24 v36, {stride}, v2")
        for i in range((q+63)//64):
            if (i+1)*64 > q: A(f"s_mov_b64 exec, {hex((1 << (q-i*64))-1)}" if q-i*64 < 32 else f"s_mov_b32 exec_hi, {hex((1 << (q-i*64-32))-1)}")
            A(f"buffer_load_dword v231, v36, s[12:15], s68 offen {tnt}\ns_add_u32 s68, s68, {64*stride}")
        A("s_mov_b64 exec, -1")
    if codetouch:
        A("s_getpc_b64 s[68:69]\nL_pc:\ns_sub_u32 s68, s68, L_pc-" + KN + "\ns_subb_u32 s69, s69, 0\nv_lshlrev_b32 v22, 7, v2")
        for i in range(3): A("v_min_u32 v23, L_codeend-" + KN + "-4, v22\nglobal_load_dword v231, v23, s[68:69]\nv_add_u32 v22, 0x2000, v22")
    if lprio: A(f"s_setprio {lprio}")
    if tlb:
        A(f"v_lshlrev_b32 v22, 18, v2\nv_min_u32 v22, {FL}, v22\nglobal_load_dword v231, v22, s[{pWS}:{pWS+1}]")
        A(f"v_lshlrev_b32 v22, 16, v2\nv_min_u32 v22, {SZ_X-4}, v22\nglobal_load_dword v231, v22, s[{pOUT}:{pOUT+1}]")
        A(f"v_lshlrev_b32 v22, 17, v2\nv_min_u32 v22, {7077888-4}, v22\nglobal_load_dword v231, v22, s[{pW2}:{pW2+1}]")
        A(f"v_mov_b32 v22, 0\ns_mov_b64 exec, 1\nglobal_load_dword v231, v22, s[{pB1}:{pB1+1}]\nglobal_load_dword v231, v22, s[{pB2}:{pB2+1}]\ns_mov_b64 exec, -1")
    def slice_touch(stride, row0, nrows, colbytes_expr_reg, maxline):
        l = A.lab("t")
        A(f"s_and_b32 s68, s{sJ}, 3\ns_mul_i32 s68, s68, {8*stride}\ns_add_u32 s68, s68, s{colbytes_expr_reg}\ns_add_u32 s68, s68, {row0*stride}")
        A(f"v_lshrrev_b32 v36, 3, v2\nv_mul_u32_u24 v36, {stride}, v36\nv_and_b32 v37, 7, v2\nv_min_u32 v37, {maxline}, v37\nv_lshl_add_u32 v36, v37, 7, v36")
        A(f"s_mov_b32 s{sIt}, 0\n{l}:\nbuffer_load_dword v231, v36, s[12:15], s68 offen {fnt}\ns_add_u32 s68, s68, {32*stride}\ns_add_u32 s{sIt}, s{sIt}, 1\ns_waitcnt vmcnt({fdepth})\ns_cmp_lt_u32 s{sIt}, {nrows//32}\ns_cbranch_scc1 {l}")
    ntch = (16*nt0+63)//64
    A(f"s_cmp_lg_u32 s{sPH}, 0\ns_cbranch_scc1 L_lt0")
    wtouch(3456, 128*nt0, tnt)
    A(f"s_waitcnt vmcnt({ntch})\ns_branch L_lt1\nL_lt0:\ns_waitcnt vmcnt(0)\nL_lt1:")
    A("v_lshrrev_b32 v4, 4, v2\nv_bfe_u32 v5, v2, 2, 2\nv_lshl_add_u32 v5, v4, 3, v5\nv_mul_u32_u24 v5, 160, v5\nv_and_b32 v6, 3, v2\nv_lshl_add_u32 v5, v6, 3, v5")
    A("v_and_b32 v6, 15, v2\nv_lshlrev_b32 v6, 12, v6\nv_lshl_add_u32 v6, v4, 4, v6")
    A.srd(28, pWS, SZ_X, 0x280000)
    A(f"s_mul_i32 s70, s{sDT}, {80*4096}\ns_lshl_b32 s68, s84, 7\ns_add_u32 s70, s70, s68")
    for k in range(10):
        o = (k&1)*5120 + (k>>1)*32
        A(f"ds_read_b64_tr_b16 v[{40+4*k}:{41+4*k}], v5 offset:{o}\nds_read_b64_tr_b16 v[{42+4*k}:{43+4*k}], v5 offset:{o+640}")
    for k in range(10):
        A(f"s_waitcnt lgkmcnt({min(15, 18-2*k)})\nbuffer_store_dwordx4 v[{40+4*k}:{43+4*k}], v6, s[28:31], s70 offen offset:{(k&1)*64} sc1")
        if k & 1: A("s_add_u32 s70, s70, 65536")
    A("s_waitcnt vmcnt(0)")
    A.arrive(8, 36)
    A.S("Lut")
    A(f"s_cmp_lg_u32 s{sPH}, 0\ns_cbranch_scc1 L_lfree")
    if stamp and 'Lt0' in names: A("s_waitcnt vmcnt(0)"); A.S("Lt0")
    if lateack: A.waitge(0, 8, 36, sleep=1)
    else: A.waitge(4, 4, 36, sleep=1)
    A.S("Lds")
    if nt0 < 16:
        A(f"s_add_u32 s{sW}, s{sW}, {nt0*128*3456}")
        wtouch(3456, 128*(16-nt0), tnt)
        A(f"s_sub_u32 s{sW}, s{sW}, {nt0*128*3456}")
    if split1:
        lsteps(0, 4)
        A("s_waitcnt vmcnt(0)")
        A.arrive(6, 36)
        A.S("Lw1a")
        lsteps(4, 4)
    else: lsteps(0, 8)
    npost = 0
    if promote:
        wtouch(3456, 1024, ""); npost = 2
    A(f"s_waitcnt vmcnt({npost})")
    A("L_lfree:")
    A("L_l2:")
    A.arrive(6, 36); A.arrive(9, 36)
    A.S("Lw1")
    A(f"s_lshl_b32 s{sNT}, s{sX}, 2\ns_lshr_b32 s68, s{sJ}, 3\ns_add_u32 s{sNT}, s{sNT}, s68")
    w_setup(A, pW2, 4096, 54, loader=True)
    if w2l2:
        A(f"s_cmp_eq_u32 s{sPH}, 0\ns_cbranch_scc1 L_l3")
        A.waitge(0, 8, 36, sleep=2)
        A(f"s_and_b32 s68, s{sJ}, 7\ns_lshl_b32 s68, s68, 16\ns_lshl_b32 s69, s{sX}, 9\ns_add_u32 s68, s68, s69")
        A("v_lshrrev_b32 v36, 2, v2\nv_lshlrev_b32 v36, 12, v36\nv_and_b32 v37, 3, v2\nv_lshl_add_u32 v36, v37, 7, v36")
        A(f"s_mov_b32 s{sIt}, 0\nL_w2t:\nbuffer_load_dword v231, v36, s[12:15], s68 offen {fnt}\ns_add_u32 s68, s68, {128*4096}\ns_add_u32 s{sIt}, s{sIt}, 1\ns_waitcnt vmcnt({fdepth})\ns_cmp_lt_u32 s{sIt}, 14\ns_cbranch_scc1 L_w2t")
        if allw2:
            A(f"s_lshl_b32 s70, s{sX}, 3\ns_add_u32 s70, s70, s{sJ}\ns_sub_u32 s70, s70, 48\nL_w2u:")
            A(f"s_mul_i32 s71, s70, 21846\ns_lshr_b32 s71, s71, 16\ns_mul_i32 s72, s71, 3\ns_sub_u32 s72, s70, s72")
            A(f"s_lshl_b32 s68, s71, 16\ns_lshl_b32 s72, s72, 9\ns_add_u32 s68, s68, s72")
            A(f"buffer_load_dword v231, v36, s[12:15], s68 offen {fnt}\ns_add_u32 s70, s70, 40\ns_waitcnt vmcnt({fdepth})\ns_cmp_lt_u32 s70, 324\ns_cbranch_scc1 L_w2u")
        A("L_l3:")
    A.waitge(5, 4, 36, sleep=2)
    A.S("Lw2a")
    if t2early: wtouch(4096, 1728, t2nt)
    lsteps(0, 4)
    if split2:
        A("s_waitcnt vmcnt(0)"); A.arrive(2, 36)
    A.waitge(5, 8, 36, sleep=1)
    lsteps(4, 4)
    if promote2: wtouch(4096, 704, "")
    A("s_waitcnt vmcnt(%d)" % (2 if promote2 else 0))
    A.arrive(9, 36)
    if not split2: A.arrive(2, 36)
    A.S("Lw2")
    A(f"ds_read_b32 v36, v{vSY} offset:12\nv_lshlrev_b32 v37, 7, v2\nv_and_b32 v38, 15, v2\nv_lshlrev_b32 v38, 7, v38")
    A(f"s_mul_i32 s51, s{sDT}, {20*128}\ns_add_u32 s51, s51, {F3}")
    A(f"s_waitcnt lgkmcnt(0)\nv_readfirstlane_b32 s{sTAG}, v36")
    A("s_mov_b64 exec, 0xfffff")
    A.poll4(37, "s51", 40, sleep=8)
    A.srd(28, pWS, SZ_X, AT)
    A(f"s_mul_i32 s68, s{sDT}, {80*4096}\ns_lshl_b32 s69, s{sNT}, 7\ns_add_u32 s68, s68, s69\nv_lshlrev_b32 v36, 12, v2\nv_lshlrev_b32 v37, 5, v38")
    A(f"buffer_load_dword v231, v36, s[28:31], s68 offen sc1\ns_add_u32 s68, s68, {64*4096}\nbuffer_load_dword v231, v37, s[28:31], s68 offen sc1")
    A(f"s_mov_b64 exec, 1\nv_mov_b32 v36, 2\nds_add_u32 v{vSY}, v36 offset:28\ns_mov_b64 exec, -1")
    A.S("Lf3")
    A.st_end()
    A("s_endpgm")
    A("L_cwave:")
    A(f"s_lshl_b32 s22, s{sX}, 6\ns_lshl_b32 s68, s{sJ}, 1\ns_add_u32 s22, s22, s68\ns_sub_u32 s68, s3, 4\ns_add_u32 s22, s22, s68")
    A(f"s_mul_i32 s23, s68, {CSZ}\ns_add_u32 s23, s23, {CREG}")
    A("s_waitcnt lgkmcnt(0)")
    A.srd(24, pWS, FLSZ, FL)
    A.srd(16, pWS, 0x500000)
    A("s_barrier")
    A("s_mov_b32 s0, 0")
    cy = yieldln
    A("L_chan:")
    A("s_lshl_b32 s68, s22, 8\nv_lshl_add_u32 v3, v2, 2, s68")
    for i, p in enumerate((pLA, pAI, pCR, pCI)): A(f"global_load_dword v{4+i}, v3, s[{p}:{p+1}] {xnt}")
    A(f"s_lshr_b32 s68, s22, 1\ns_lshl_b32 s68, s68, 2\ns_load_dword s20, s[{pLDT}:{pLDT+1}], s68\ns_load_dword s21, s[{pDS}:{pDS+1}], s68")
    sL, sLlo, sLn2, sI, sIlo = 28, 29, 30, 31, 32
    A(f"s_mov_b32 s{sL}, {f32bits(L2E_HI)}\ns_mov_b32 s{sLlo}, {f32bits(L2E_LO)}\ns_mov_b32 s{sLn2}, {f32bits(math.log(2))}\ns_mov_b32 s{sI}, {f32bits(I2P_HI)}\ns_mov_b32 s{sIlo}, {f32bits(I2P_LO)}")
    A("s_mov_b32 s34, 0x46800000\ns_mov_b32 s35, 0x46800000")
    A("v_lshl_add_u32 v8, v2, 2, s23")
    A("v_and_b32 v9, 15, v2\nv_lshrrev_b32 v10, 4, v2")
    A("v_mul_u32_u24 v11, 272, v9\nv_lshl_add_u32 v11, v10, 4, v11\nv_add_u32 v11, s23, v11")
    ACC = 24
    for i in range(12): A(f"v_mov_b32 v{ACC+i}, 0")
    A("s_and_b32 s68, s22, 1\ns_lshl_b32 s68, s68, 4")
    A("s_waitcnt lgkmcnt(0)")
    A("s_lshr_b32 s20, s20, s68\ns_lshl_b32 s20, s20, 16\ns_lshr_b32 s21, s21, s68\ns_lshl_b32 s21, s21, 16")
    A("v_mov_b32 v12, s20")
    A.exp_precise(12, 12, 13, 14, sL, sLlo, sLn2)
    A.bfr(12, 12)
    A("s_waitcnt vmcnt(0)")
    if yieldln: A.waitge(0, 4, 13, sleep=2)
    A.S("Cpar")
    A("v_lshlrev_b32 v13, 16, v6\nv_lshlrev_b32 v14, 16, v7\nv_and_b32 v15, 0x7fff0000, v6\nv_and_b32 v16, 0x7fff0000, v7")
    A("v_max3_f32 v13, |v13|, |v14|, v15\nv_max_f32 v13, v13, v16")
    for ctl in ("quad_perm:[1,0,3,2]", "quad_perm:[2,3,0,1]", "row_half_mirror", "row_mirror"):
        A(f"v_max_f32_dpp v13, v13, v13 {ctl} row_mask:0xf bank_mask:0xf")
    for i in range(4): A(f"v_readlane_b32 s{82+i}, v13, {16*i}")
    A("s_max_u32 s82, s82, s83\ns_max_u32 s84, s84, s85\ns_max_u32 s82, s82, s84\ns_lshr_b32 s82, s82, 23\ns_max_u32 s82, s82, 25\ns_min_u32 s82, s82, 254")
    A("s_sub_u32 s83, 265, s82\ns_lshl_b32 s83, s83, 23")
    A("s_sub_u32 s84, s82, 24\ns_lshl_b32 s84, s84, 23")
    A("s_mov_b32 s85, 16")
    E1, E8, H, F = 40, 42, 44, 46
    rowof = {}
    for e in range(8): rowof[(0,e)] = e; rowof[(1,e)] = 8+e
    for n,(i,e) in enumerate([(2,0),(2,4),(3,0),(3,4),(2,2),(2,6),(3,2),(3,6),(4,0),(4,4),(5,0),(5,4),(6,0),(6,4),(7,0),(7,4)]): rowof[(i,e)] = 16+n
    for i in range(8,17): rowof[(i,0)] = 32+i-8
    def cmul(d, x, y):
        return [f"v_pk_mul_f32 v[{d}:{d+1}], v[{x}:{x+1}], v[{y}:{y+1}] op_sel:[0,0] op_sel_hi:[0,1]",
                f"v_pk_fma_f32 v[{d}:{d+1}], v[{x}:{x+1}], v[{y}:{y+1}], v[{d}:{d+1}] op_sel:[1,1,0] op_sel_hi:[1,0,1] neg_lo:[1,0,0]"]
    A("L_kpass:")
    for d, s in ((13,4),(14,5),(F,6),(F+1,7)): A(f"v_lshlrev_b32 v{d}, s85, v{s}\nv_and_b32 v{d}, 0xffff0000, v{d}")
    A.exp_precise(13, 13, 15, 16, sL, sLlo, sLn2)
    A(f"v_mul_f32 v14, v14, v12")
    A.bfr(13, 13)
    A(f"v_mul_f32 v15, s{sI}, v14\nv_mul_f32 v13, v13, v12\nv_fma_f32 v16, v14, s{sI}, -v15\nv_mul_f32 v13, s{sL}, v13\nv_fma_f32 v16, v14, s{sIlo}, v16")
    A(f"v_mul_f32 v{F}, s83, v{F}\nv_mul_f32 v{F+1}, s83, v{F+1}")
    gens = ((1,E1),(8,E8),(128,H))
    for n,(q,Eq) in enumerate(gens): A(f"v_mul_f32 v{17+2*n}, {f32bits(-q)}, v13\nv_mul_f32 v{18+2*n}, {f32bits(q)}, v15")
    for n,(q,Eq) in enumerate(gens): A(f"v_exp_f32 v{17+2*n}, v{17+2*n}\nv_fract_f32 v{18+2*n}, v{18+2*n}\nv_fmamk_f32 v{18+2*n}, v16, {f32bits(q)}, v{18+2*n}")
    for n,(q,Eq) in enumerate(gens): A(f"v_cos_f32 v{Eq}, v{18+2*n}\nv_sin_f32 v{Eq+1}, v{18+2*n}")
    for n,(q,Eq) in enumerate(gens): A(f"v_mul_f32 v{Eq}, v{Eq}, v{17+2*n}\nv_mul_f32 v{Eq+1}, v{Eq+1}, v{17+2*n}")
    def emit(src, row, tmp, neg):
        return [f"v_cvt_pk_f16_f32 v{tmp}, v{src}, {'-' if neg else ''}v{src+1}", f"ds_write_b32 v8, v{tmp} offset:{row*272}"]
    def chain(e, n, pp, tmps):
        out = []; prev = F+2*e
        for i in range(1, n+1):
            d = pp[i % 2]
            out += cmul(d, prev, H) + emit(d, rowof[(i,e)], tmps[i%2], True); prev = d
        return out
    T1 = ["v_mov_b32_e64 v74, s34", f"v_pk_mul_f32 v[62:63], v[{E8}:{E8+1}], s[34:35]", "v_cvt_pk_f16_f32 v74, v74, 0", f"ds_write_b32 v8, v74 offset:{41*272}"] + emit(62, 42, 75, False)
    prev = 62
    for j in range(2, 16):
        d = 62 + 2*((j+1) % 2)
        T1 += cmul(d, prev, E8) + emit(d, 41+j, 74+(j%2), False); prev = d
    T1 += chain(6, 3, (62,64), (74,75))
    T3 = chain(0, 16, (66,68), (76,77)) + chain(2, 3, (66,68), (76,77))
    T2 = emit(F, 0, 78, True)
    for e in range(1, 8): T2 += cmul(F+2*e, F+2*e-2, E1) + emit(F+2*e, e, 78+(e%2), True)
    for n,e in enumerate((1,3,5,7)):
        d = 70+2*(n%2)
        T2 += cmul(d, F+2*e, H) + emit(d, rowof[(1,e)], 78+(n%2), True)
    T2 += chain(4, 7, (70,72), (78,79))
    A(".p2align 3")
    for i in range(max(len(T1),len(T2),len(T3))):
        for T in (T2, T3, T1):
            if i < len(T): A(T[i])
    A("s_waitcnt lgkmcnt(0)")
    for ks in range(4): A(f"ds_read_b128 v[{80+4*ks}:{83+4*ks}], v11 offset:{41*272+ks*64}")
    for T in range(3):
        for ks in range(4): A(f"ds_read_b128 v[{96+16*T+4*ks}:{99+16*T+4*ks}], v11 offset:{T*16*272+ks*64}")
    for T in range(3):
        A(f"s_waitcnt lgkmcnt({8-4*T})")
        for ks in range(4):
            A(f"v_mfma_f32_16x16x32_f16 v[{ACC+4*T}:{ACC+4*T+3}], v[{96+16*T+4*ks}:{99+16*T+4*ks}], v[{80+4*ks}:{83+4*ks}], v[{ACC+4*T}:{ACC+4*T+3}]")
    A("s_sub_u32 s85, s85, 16\ns_cbranch_scc0 L_kpass")
    A("v_mul_f32 v12, s84, v12")
    A("v_lshlrev_b32 v13, 5, v9\nv_add_u32 v13, s23, v13")
    A("v_lshrrev_b32 v14, 1, v10\nv_lshlrev_b32 v14, 9, v14\nv_and_b32 v15, 1, v10\nv_lshl_add_u32 v14, v15, 4, v14\nv_add_u32 v14, v14, v13")
    A("v_max_u32 v15, 1, v10\nv_lshlrev_b32 v15, 10, v15\nv_cmp_eq_u32 vcc, 1, v10\nv_cndmask_b32_e64 v16, 0, 8, vcc")
    A("v_add3_u32 v15, v15, v16, v13\nv_lshl_add_u32 v16, v10, 11, v13")
    for i in range(12): A(f"v_mul_f32 v{ACC+i}, v{ACC+i}, v12")
    A(f"ds_write_b128 v14, v[{ACC}:{ACC+3}]")
    A(f"ds_write2_b32 v15, v{ACC+4}, v{ACC+5} offset0:0 offset1:4\nds_write2_b32 v15, v{ACC+6}, v{ACC+7} offset0:128 offset1:132")
    for r in range(4): A(f"ds_write_b32 v16, v{ACC+8+r} offset:{4096+512*r}")
    A("v_lshl_add_u32 v13, v2, 5, s23")
    A("v_sub_u32 v14, 63, v2\nv_lshl_add_u32 v14, v14, 4, s23")
    A("ds_read_b128 v[40:43], v13\nds_read_b128 v[44:47], v13 offset:16\nds_read_b32 v48, v13 offset:32")
    A("ds_read_b32 v49, v13 offset:2048\nds_read_b32 v50, v13 offset:2064\nds_read_b32 v51, v13 offset:2080")
    A("ds_read_b32 v52, v13 offset:4096\nds_read_b32 v53, v13 offset:4128\nds_read_b32 v54, v13 offset:6144\nds_read_b32 v55, v13 offset:6176")
    A("v_cmp_le_u32 vcc, 32, v2\nv_and_b32 v15, 1, v2\nv_cmp_eq_u32 s[82:83], 1, v15")
    A("v_mov_b32 v4, 0\nv_mov_b32 v5, 0\nv_lshl_add_u32 v6, v2, 3, s23")
    A("s_waitcnt lgkmcnt(0)")
    A(f"ds_write_b64 v6, v[4:5] offset:{KRO+4096}")
    A("s_mov_b64 exec, 0xf\nds_write_b64 v6, v[4:5]\ns_mov_b64 exec, -1")
    A("v_cndmask_b32 v41, v41, v40, vcc\nv_cndmask_b32 v43, v43, v44, vcc\nv_cndmask_b32 v45, v45, v44, vcc\nv_cndmask_b32 v47, v47, v48, vcc")
    A("v_cvt_pk_bf16_f32 v56, v47, v46\nv_cvt_pk_bf16_f32 v57, v45, v44\nv_cvt_pk_bf16_f32 v58, v43, v42\nv_cvt_pk_bf16_f32 v59, v41, v40")
    A(f"ds_write_b128 v14, v[56:59] offset:{KRO+3072}")
    A("v_cvt_pk_bf16_f32 v60, v51, v51\nv_cvt_pk_bf16_f32 v61, v50, v50\nv_cvt_pk_bf16_f32 v62, v50, v49\nv_cvt_pk_bf16_f32 v63, v49, v49")
    A(f"ds_write_b128 v14, v[60:63] offset:{KRO+2048}")
    for n,(c,nx) in enumerate(((52,53),(54,55))):
        o = 64+4*n
        A(f"v_cndmask_b32 v40, v{c}, v{nx}, s[82:83]")
        A(f"v_cvt_pk_bf16_f32 v{o}, v{nx}, v{nx}\nv_cvt_pk_bf16_f32 v{o+2}, v{c}, v{c}\nv_cvt_pk_bf16_f32 v{o+1}, v{nx}, v40\nv_mov_b32 v{o+3}, v{o+2}")
        A(f"ds_write_b128 v14, v[{o}:{o+3}] offset:{KRO+1024*(1-n)}")
    A.S("Ckgen")
    A.srd(28, pWS, SZ_X, 0x280000)
    A("v_lshlrev_b32 v3, 4, v2\ns_lshl_b32 s82, s22, 12")
    A("v_lshl_add_u32 v7, v2, 4, s23")
    A("v_and_b32 v10, 1, v9\nv_add_u32 v11, v9, v10\nv_lshrrev_b32 v19, 4, v2\nv_lshl_add_u32 v11, v19, 3, v11\nv_lshlrev_b32 v11, 1, v11")
    A(f"v_xor_b32 v10, 1, v10\nv_mul_u32_u24 v10, {U1O}, v10\nv_add3_u32 v12, v11, v10, s23")
    for m in range(1, 4): A(f"v_add_u32 v{12+m}, {1024*m}, v12")
    A(f"v_lshlrev_b32 v16, 4, v19\nv_lshlrev_b32 v17, 5, v9\nv_sub_u32 v16, v16, v17\ns_add_u32 s83, s23, {KRO+480}\nv_add_u32 v16, s83, v16")
    A("v_lshl_add_u32 v18, v19, 3, v17\nv_add_u32 v18, s23, v18")
    A("v_and_b32 v20, 1, v19\nv_lshl_add_u32 v17, v20, 9, v17\nv_lshrrev_b32 v20, 1, v19\nv_lshl_add_u32 v17, v20, 4, v17")
    if gprio: A(f"s_setprio {gprio}")
    waitF1(True)
    if gwait:
        k = A.lab("g")
        A(f"s_cmp_lg_u32 s{sPH}, 0\ns_cbranch_scc1 {k}")
        A.waitge(5, gwait, 36, sleep=4)
        A(f"{k}:")
    A.S("Cseen")
    A("s_add_u32 m0, s23, 32\ns_nop 0")
    for i in range(4): A(f"buffer_load_dwordx4 v3, s[28:31], s82 offen offset:{1024*i} sc1 lds")
    CA, CB, CACC = 24, 56, 152
    for i in range(32): A(f"v_mov_b32 v{CACC+i}, 0")
    A.srd(28, pWS, SZ_X, AT)
    A("s_mov_b32 s20, s21\ns_lshl_b32 s82, s22, 12\ns_mov_b32 s85, 0")
    A("s_waitcnt vmcnt(0)")
    A.S("Cgat")
    for i in range(4): A(f"ds_read_b128 v[{24+8*i}:{27+8*i}], v7 offset:{1024*i}\nds_read_b32 v{28+8*i}, v7 offset:{1024*i+16}")
    A("ds_read_b128 v[56:59], v7 offset:4096\nds_read_b32 v60, v7 offset:4112")
    for i in range(5):
        A(f"s_waitcnt lgkmcnt({8-2*i})")
        r = 24+8*i; o = 64+4*i
        for q in range(4): A(f"v_alignbit_b32 v{o+q}, v{r+q+1}, v{r+q}, 16")
        if i == 4: A("s_mov_b64 exec, 3")
        A(f"ds_write_b128 v7, v[{o}:{o+3}] offset:{U1O+1024*i}")
    A("s_mov_b64 exec, -1")
    A.S("Cu1")
    def loads(s, rel):
        out = []
        for x in range(8):
            a = CA + 64*s + 4*x; b = CB + 64*s + 4*x
            o = 128*(x & 1) + 16*rel
            out.append(f"ds_read_b128 v[{b}:{b+3}], v16 offset:{512*(7-x)+64*rel}")
            out.append(f"ds_read2_b32 v[{a}:{a+1}], v{12+(x>>1)} offset0:{o} offset1:{o+1}")
            out.append(f"ds_read2_b32 v[{a+2}:{a+3}], v{12+(x>>1)} offset0:{o+2} offset1:{o+3}")
        return out
    A("v_mov_b32 v21, 0")
    if cwait:
        k = A.lab("g")
        A(f"s_cmp_lg_u32 s{sPH}, 0\ns_cbranch_scc1 {k}")
        A.waitge(5, cwait, 36, sleep=2)
        A(f"{k}:")
    if cprio: A(f"s_setprio {cprio}")
    for l in loads(0, 0): A(l)
    A(".p2align 3\nL_conv:")
    for s in range(2):
        A("s_waitcnt lgkmcnt(0)\ns_nop 0")
        if yieldx:
            y1 = A.lab("y")
            A(f"v_readfirstlane_b32 s68, v21\ns_lshl_b32 s69, s{sPH}, 4\ns_add_u32 s68, s68, s69\ns_sub_u32 s68, s68, 1\ns_cmp_lt_u32 s68, 7\ns_cbranch_scc0 {y1}")
            A.waitge(5, 8, 21, sleep=2)
            A(f"{y1}:\nds_read_b32 v21, v{vSY} offset:20")
        nxt = loads(1-s, s+1)
        cnt = 0
        for kap in range(8):
            for mt in range(kap, 8):
                a = CA + 64*s + 4*kap; b = CB + 64*s + 4*(mt-kap); c = CACC + 4*mt
                A(f"v_mfma_f32_16x16x32_bf16 v[{c}:{c+3}], v[{a}:{a+3}], v[{b}:{b+3}], v[{c}:{c+3}]")
                if cnt < len(nxt): A(nxt[cnt])
                cnt += 1
    for r in (12, 13, 14, 15, 16): A(f"v_add_u32 v{r}, 128, v{r}")
    if not noconv: A("s_add_u32 s85, s85, 1\ns_cmp_lt_u32 s85, 4\ns_cbranch_scc1 L_conv")
    A("s_waitcnt lgkmcnt(0)")
    if cprio: A("s_setprio 0")
    A.S("Cconv")
    for mt in range(8): A(f"ds_read_b64 v[{24+4*mt}:{25+4*mt}], v18 offset:{32+512*mt}")
    Y = 56
    for mt in range(8): A(f"v_cvt_pk_bf16_f32 v{Y+4*mt}, v{CACC+4*mt}, v{CACC+4*mt+1}\nv_cvt_pk_bf16_f32 v{Y+4*mt+2}, v{CACC+4*mt+2}, v{CACC+4*mt+3}")
    for i in range(16): A(f"v_and_b32 v{Y+2*i+1}, 0xffff0000, v{Y+2*i}\nv_lshlrev_b32 v{Y+2*i}, 16, v{Y+2*i}")
    A("s_waitcnt lgkmcnt(0)")
    for mt in range(8):
        t = 24+4*mt
        A(f"v_lshlrev_b32 v{t+2}, 16, v{t+1}\nv_and_b32 v{t+3}, 0xffff0000, v{t+1}\nv_and_b32 v{t+1}, 0xffff0000, v{t}\nv_lshlrev_b32 v{t}, 16, v{t}")
    for i in range(16): A(f"v_pk_mul_f32 v[{24+2*i}:{25+2*i}], v[{24+2*i}:{25+2*i}], s[20:21]")
    for i in range(16): A(f"v_cvt_pk_bf16_f32 v{24+2*i}, v{24+2*i}, v{25+2*i}")
    for i in range(16): A(f"v_and_b32 v{25+2*i}, 0xffff0000, v{24+2*i}\nv_lshlrev_b32 v{24+2*i}, 16, v{24+2*i}")
    for i in range(16): A(f"v_pk_add_f32 v[{24+2*i}:{25+2*i}], v[{24+2*i}:{25+2*i}], v[{Y+2*i}:{Y+2*i+1}]")
    for i in range(16): A(f"v_cvt_pk_bf16_f32 v{88+i}, v{24+2*i}, v{25+2*i}")
    for p in range(4): A(f"v_permlane16_swap_b32 v{88+4*p}, v{90+4*p}\nv_permlane16_swap_b32 v{89+4*p}, v{91+4*p}")
    for p in range(4): A(f"buffer_store_dwordx4 v[{88+4*p}:{91+4*p}], v17, s[28:31], s82 offen offset:{1024*p} sc1")
    A(f"s_lshr_b32 s82, s22, 2\ns_lshl_b32 s82, s82, 7\ns_and_b32 s83, s22, 3\ns_lshl_b32 s83, s83, 2\ns_add_u32 s82, s82, s83\ns_add_u32 s82, s82, {F3}\ns_waitcnt vmcnt(0)")
    A.setflag("s82", 4)
    A("s_cmp_eq_u32 s0, 1\ns_cbranch_scc1 L_chan_ret")
    A.st_end()
    A("L_end:\ns_endpgm\nL_codeend:")
    ref = open(f"cdna_kernels/{NAME}.s.ref").read().split("\n")
    head = [l for l in ref if l.startswith(";") and "@launch" not in l]
    out = head + [f"; @launch grid=(256,1,1) block=(448,1,1) lds={LDS_TOTAL}", '.amdgcn_target "amdgcn-amd-amdhsa--gfx950"\n.text']
    out += fix_hazards(A.L)
    out += ['.section .rodata,"a"', kdesc(KN, 240, 102)]
    return "\n".join(out) + "\n"

if __name__ == "__main__":
    path = sys.argv[1] if len(sys.argv) > 1 else f"cdna_kernels/{NAME}.s"
    kw = eval("dict(%s)" % sys.argv[2]) if len(sys.argv) > 2 else {}
    open(path, "w").write(build(**kw))
```
